```python
import torch

def _softmax(x, axis=-1):
    return torch.softmax(x, dim=axis)
def _gelu(x):
    return torch.nn.functional.gelu(x, approximate="tanh")
def _silu(x):
    return torch.nn.functional.silu(x)
def _sigmoid(x):
    return torch.sigmoid(x)
def _layernorm(x, axis=-1, eps=1e-5):
    m = x.mean(dim=axis, keepdim=True)
    v = x.var(dim=axis, keepdim=True, unbiased=False)
    return (x - m) / torch.sqrt(v + eps)
def _scatter_add(tgt, idx, src, axis=0):
    return tgt.clone().index_add_(axis, idx, src)
def _segment_sum(src, seg, n):
    out = torch.zeros((n,) + src.shape[1:], dtype=src.dtype)
    return out.index_add_(0, seg, src)
def _pad(x, pw):
    flat = tuple(v for pair in reversed(pw) for v in pair)
    return torch.nn.functional.pad(x, flat)

kernel_name = 'interleave_layers__ssm_conv_h3__linear_kernel_hedgehog__prompt'

def setup_inputs():

    _w = (lambda a: (lambda t: t.to(torch.bfloat16) if t.is_floating_point() else t)(torch.as_tensor(a)))
    def _A_setup():
        B, S, D = 1, 2048, 1024
        ks = 4
        return {
            "q": _w((lambda *s: torch.randn(*s, dtype=torch.bfloat16) * 0.05)(B, S, D)),
            "k": _w((lambda *s: torch.randn(*s, dtype=torch.bfloat16) * 0.4)(B, S, D)),
            "v": _w((lambda *s: torch.randn(*s, dtype=torch.bfloat16) * 0.4)(B, S, D)),
            "shift_k": _w((lambda *s: torch.randn(*s, dtype=torch.bfloat16) * 0.4)(D, ks) * 0.5),
            "ssm_k": _w((lambda *s: torch.randn(*s, dtype=torch.bfloat16) * 0.4)(D, S) * (1.0 / S ** 0.5)),
            "ssm_D": _w((lambda *s: torch.randn(*s, dtype=torch.bfloat16) * 0.4)(D)),
        }
    _A_in = _A_setup()

    def _B_setup():
        B, S, D, H = 1, 2048, 1024, 32
        Dh = D // H
        return {
            "x": _w((lambda *s: torch.randn(*s, dtype=torch.bfloat16) * 0.05)(B, S, D)),
            "wqkv": _w((lambda *s: torch.randn(*s, dtype=torch.bfloat16) * 0.2)(D, 3 * D)),
            "w_phi": _w((lambda *s: torch.randn(*s, dtype=torch.bfloat16) * 0.2)(H, Dh, Dh) * (Dh ** -0.5)),
            "wo": _w((lambda *s: torch.randn(*s, dtype=torch.bfloat16) * 0.05)(D, D)),
        }
    _B_in = _B_setup()

    return {
        "A_q": _A_in["q"],
        "A_k": _A_in["k"],
        "A_v": _A_in["v"],
        "A_shift_k": _A_in["shift_k"],
        "A_ssm_k": _A_in["ssm_k"],
        "A_ssm_D": _A_in["ssm_D"],
        "B_x": _B_in["x"],
        "B_wqkv": _B_in["wqkv"],
        "B_w_phi": _B_in["w_phi"],
        "B_wo": _B_in["wo"],
    }

def reference(A_q, A_k, A_v, A_shift_k, A_ssm_k, A_ssm_D, B_x, B_wqkv, B_w_phi, B_wo):
    def _A_ref(q, k, v, shift_k, ssm_k, ssm_D):
        B, S, D = q.shape
        ks = shift_k.shape[-1]
        k_pad = _pad(k, ((0, 0), (ks - 1, 0), (0, 0)))
        k_shift = torch.zeros_like(k)
        for t in range(ks):
            k_shift = k_shift + k_pad[:, t:t + S, :] * shift_k[:, ks - 1 - t][None, None, :]
        kv = k_shift * v
        L = 2 * S
        kv_pad = _pad(kv, ((0, 0), (0, S), (0, 0)))
        kf_pad = _pad(ssm_k, ((0, 0), (0, S)))
        kv_f = (lambda x, axes=(-2,-1): torch.fft.rfft2(x.float(), dim=axes))(kv_pad[:, None, :, :], axes=(1, 2))
        kf_f = (lambda x, axes=(-2,-1): torch.fft.rfft2(x.float(), dim=axes))(kf_pad[:, None, :], axes=(1, 2))
        kf_f = (lambda x, *d: x.permute(*d))(kf_f, 1, 2, 0)
        y_f = kv_f * kf_f[None, :, :, :]
        y = (lambda x, s, axes=(-2,-1): torch.fft.irfft2(x, s=s, dim=axes).to(torch.bfloat16))(y_f, (1, L), axes=(1, 2))[:, 0, :S, :]
        y = y + kv * ssm_D[None, None, :]
        return q * y

    def _B_ref(x, wqkv, w_phi, wo):
        B, S, D = x.shape
        H = 32; Dh = D // H
        qkv = (lambda x, *d: x.permute(*d))((x @ wqkv).reshape(B, S, 3, H, Dh), 2, 0, 3, 1, 4)
        q, k, v = qkv[0], qkv[1], qkv[2]
        pq = torch.einsum("bhsd,hdf->bhsf", q, w_phi)
        pk = torch.einsum("bhsd,hdf->bhsf", k, w_phi)
        phi_q = torch.concatenate([_softmax(pq, axis=-1), _softmax(-pq, axis=-1)], axis=-1)
        phi_k = torch.concatenate([_softmax(pk, axis=-1), _softmax(-pk, axis=-1)], axis=-1)
        kv = torch.einsum("bhsf,bhsd->bhfd", phi_k, v)
        z  = torch.einsum("bhsf->bhf", phi_k)
        num = torch.einsum("bhqf,bhfd->bhqd", phi_q, kv)
        den = torch.einsum("bhqf,bhf->bhq", phi_q, z)[..., None] + 1e-6
        o = num / den
        return (lambda x, *d: x.permute(*d))(o, 0, 2, 1, 3).reshape(B, S, D) @ wo

    x = A_q
    x = x + _A_ref(_layernorm(x, axis=-1), A_k, A_v, A_shift_k, A_ssm_k, A_ssm_D)
    x = x + _B_ref(_layernorm(x, axis=-1), B_wqkv, B_w_phi, B_wo)
    x = x + _A_ref(_layernorm(x, axis=-1), A_k, A_v, A_shift_k, A_ssm_k, A_ssm_D)
    x = x + _B_ref(_layernorm(x, axis=-1), B_wqkv, B_w_phi, B_wo)
    return x
```

```python
import re

TRANS = ('v_exp_f32','v_log_f32','v_rcp_f32','v_rsq_f32','v_sqrt_f32','v_sin_f32','v_cos_f32','v_rcp_iflag_f32')

def regs_of(tok):
    tok = tok.strip()
    neg = tok.lstrip('-')
    if neg.startswith('abs(') and neg.endswith(')'): neg = neg[4:-1]
    if neg.startswith('|') and neg.endswith('|'): neg = neg[1:-1]
    m = re.fullmatch(r'([vsa])(\d+)', neg)
    if m: return {(m.group(1), int(m.group(2)))}
    m = re.fullmatch(r'([vsa])\[(\d+):(\d+)\]', neg)
    if m: return {(m.group(1), i) for i in range(int(m.group(2)), int(m.group(3))+1)}
    if neg in ('vcc','vcc_lo','vcc_hi'): return {('x','vcc')}
    if neg in ('exec','exec_lo','exec_hi'): return {('x','exec')}
    if neg == 'm0': return {('x','m0')}
    return set()

class Ins:
    __slots__=('text','op','ops','mods','defs','uses','kind','passes','srcc')
    def __init__(self, text):
        self.text = text
        t = text.split(';')[0].strip()
        parts = t.split(None, 1)
        self.op = parts[0]
        rest = parts[1] if len(parts) > 1 else ''
        toks = []; depth=0; cur=''
        for ch in rest:
            if ch in '[(': depth+=1
            if ch in '])': depth-=1
            if ch==',' and depth==0: toks.append(cur.strip()); cur=''
            else: cur+=ch
        if cur.strip(): toks.append(cur.strip())
        mods = []
        if toks:
            last = toks[-1].split()
            toks[-1] = last[0]; mods = last[1:]
        self.ops = toks; self.mods = mods
        self.defs=set(); self.uses=set(); self.passes=0; self.srcc=set()
        op = self.op
        R = [regs_of(x) for x in toks]
        def U(idx):
            for i in idx:
                if i < len(R): self.uses |= R[i]
        n = len(R)
        self.kind='other'
        base = re.sub(r'_(e32|e64|dpp|sdwa)$','',op)
        if op.startswith('v_mfma'):
            self.kind='mfma'; self.defs=R[0]; U([1,2,3]); self.srcc = R[3] if n>3 else set()
            self.passes = 8 if '32x32' in op else 4
        elif op.startswith('v_'):
            self.kind='valu'
            if base.startswith('v_cmp'):
                self.defs=set(R[0]); U(range(1,n))
                if base.startswith('v_cmpx'): self.defs |= {('x','exec')}
            elif base in ('v_readfirstlane_b32','v_readlane_b32'):
                self.defs=set(R[0]); U(range(1,n))
            elif base.startswith('v_permlane') and 'swap' in base:
                self.defs=R[0]|R[1]; U([0,1])
            elif base in ('v_add_co_u32','v_sub_co_u32','v_subrev_co_u32'):
                self.defs=R[0]|R[1]; U(range(2,n))
            elif base in ('v_addc_co_u32','v_subb_co_u32','v_subbrev_co_u32'):
                self.defs=R[0]|R[1]; U(range(2,n))
            elif base in ('v_fmac_f32','v_pk_fmac_f16','v_dot2c_f32_bf16','v_writelane_b32'):
                self.defs=set(R[0]); U(range(0,n))
            elif base=='v_cndmask_b32':
                self.defs=set(R[0]); U(range(1,n))
                if n==3: self.uses |= {('x','vcc')}
            elif base=='v_nop':
                pass
            else:
                self.defs=set(R[0]); U(range(1,n))
            if 'dpp' in op or any(m.startswith(('row_','wave_','quad_perm','row_bcast')) for m in mods):
                self.uses |= R[0]
                self.kind='dpp'
        elif op.startswith('ds_'):
            self.kind='ds'
            if op.startswith(('ds_read','ds_bpermute','ds_permute','ds_swizzle')):
                self.defs=set(R[0]); U(range(1,n))
            else:
                U(range(0,n))
        elif op.startswith(('buffer_','global_')):
            self.kind='vmem'
            if op.startswith(('buffer_load','global_load')):
                if 'lds' in mods or op.startswith('global_load_lds'):
                    U(range(0,n)); self.uses |= {('x','m0')}
                else:
                    self.defs=set(R[0]); U(range(1,n))
                    if 'd16' in op: self.uses |= R[0]
            elif op.startswith(('buffer_wbl2','buffer_inv')):
                pass
            else:
                U(range(0,n))
                if 'atomic' in op and 'sc0' in mods: self.defs=set(R[0])
        elif op.startswith('s_'):
            self.kind='salu'
            if op in ('s_waitcnt','s_barrier','s_nop','s_endpgm','s_branch','s_setprio','s_sleep') or op.startswith('s_cbranch'):
                self.kind='ctl'
                if op=='s_cbranch_vccz' or op=='s_cbranch_vccnz': self.uses={('x','vcc')}
            elif op.startswith('s_cmp'):
                U(range(0,n))
            elif op.startswith(('s_load','s_memtime','s_memrealtime','s_getpc')):
                self.kind='smem'; self.defs=set(R[0]); U(range(1,n))
            elif 'saveexec' in op:
                self.defs=R[0]|{('x','exec')}; U(range(1,n)); self.uses|={('x','exec')}
            else:
                self.defs=set(R[0]); U(range(1,n))
    def states(self):
        if self.op=='s_nop': return int(self.ops[0])+1
        return 1

def isv(s): return {r for r in s if r[0] in 'va'}
def iss(s): return {r for r in s if r[0]=='s' or r==('x','vcc')}

def need(prod, cons):
    w = 0
    pv = isv(prod.defs)
    valu_p = prod.kind in ('valu','dpp')
    if valu_p:
        if cons.kind=='mfma' and pv & cons.uses: w=max(w,2)
        if cons.kind=='dpp' and pv & cons.uses: w=max(w,2)
        if cons.op.startswith('v_permlane') and pv & cons.uses: w=max(w,2)
        if cons.op.startswith(('v_readlane','v_readfirstlane')) and pv & cons.uses: w=max(w,1)
        ps = iss(prod.defs)
        if ps:
            if cons.kind in ('valu','dpp') and ps & cons.uses:
                w=max(w, 4 if cons.op.startswith(('v_readlane','v_writelane')) else 2)
            if cons.kind=='vmem' and ps & cons.uses: w=max(w,5)
        if prod.op.startswith(TRANS) and cons.kind in ('valu','dpp','mfma') and pv & cons.uses: w=max(w,1)
        if ('x','exec') in prod.defs:
            if cons.kind=='dpp': w=max(w,5)
            if cons.kind=='mfma': w=max(w,4)
            if cons.op.startswith(('v_readlane','v_readfirstlane','v_writelane','v_permlane')): w=max(w,4)
    if prod.kind=='mfma':
        big = 12 if prod.passes==8 else 8
        if cons.kind=='mfma':
            ab = set()
            for t in cons.ops[1:3]: ab |= regs_of(t)
            if pv & ab: w=max(w,big)
            if pv & cons.srcc:
                if not (regs_of(cons.ops[3])==prod.defs and cons.passes==prod.passes): w=max(w, big-2)
            if (pv & cons.defs) and regs_of(cons.ops[0])!=prod.defs: w=max(w,big)
        elif cons.kind in ('valu','dpp'):
            if pv & (cons.uses|cons.defs): w=max(w,big)
            if prod.srcc & cons.defs: w=max(w, 7 if prod.passes==8 else 3)
        elif cons.kind in ('vmem','ds'):
            if pv & (cons.uses|cons.defs): w=max(w,big)
    if prod.kind in ('salu',) and ('x','m0') in prod.defs:
        if ('x','m0') in cons.uses and cons.kind=='vmem': w=max(w,1)
    if prod.kind=='vmem' and prod.op.startswith(('buffer_store_dwordx3','buffer_store_dwordx4','global_store_dwordx3','global_store_dwordx4')):
        data = regs_of(prod.ops[0]) if prod.op.startswith('buffer') else regs_of(prod.ops[1])
        if cons.kind in ('valu','dpp') and data & cons.defs: w=max(w,2)
        elif cons.kind in ('ds','vmem','mfma') and data & cons.defs: w=max(w,1)
    return w

class Kern:
    def __init__(self):
        self.items=[]
    def __call__(self, text):
        for line in text.split('\n'):
            s=line.strip()
            if not s: continue
            if s.startswith(';') or s.startswith('.') or s.endswith(':'):
                self.items.append(s)
            else:
                self.items.append(Ins(s))
        return self
    def c(self, txt): self.items.append('; '+txt)
    def finish(self):
        out=[]; hist=[]
        MAXW=12
        def required(seq, ins):
            dist=0; req=0
            for p in reversed(seq):
                w=need(p,ins)
                if w>dist: req=max(req,w-dist)
                dist+=p.states()
                if dist>=MAXW+1: break
            return req
        labels={}
        for it in self.items:
            if isinstance(it,str):
                out.append(it)
                if it.endswith(':'): labels[it[:-1]]=len(hist)
                continue
            r=required(hist,it)
            while r>0:
                k=min(r,16)
                nop=Ins(f's_nop {k-1}'); out.append(nop); hist.append(nop); r-=k
            out.append(it); hist.append(it)
        idx=0; pos={}
        lin=[x for x in out if isinstance(x,Ins)]
        i=0
        for x in out:
            if isinstance(x,Ins): i+=1
            elif x.endswith(':'): pos[x[:-1]]=i
        for i,x in enumerate(lin):
            if x.op=='s_branch' or x.op.startswith('s_cbranch'):
                tgt=x.ops[0]
                if tgt not in pos: continue
                seq=lin[max(0,i-MAXW-2):i+1]
                j=pos[tgt]; cur=list(seq); dist=0
                while j<len(lin) and dist<=MAXW:
                    r=required(cur,lin[j])
                    assert r==0, f"hazard across branch to {tgt}: {lin[j].text} needs {r} more"
                    cur.append(lin[j]); dist+=lin[j].states(); j+=1
        txt=[]
        for x in out:
            if isinstance(x,Ins): txt.append('    '+x.text)
            elif x.endswith(':') : txt.append(x)
            else: txt.append('    '+x if x.startswith(';') else x)
        return '\n'.join(txt)
```

```python
import sys
from common import *
import k0, k1
def build(kernels, path):
    head = open('cdna_kernels/'+NAME+'.s.ref').read().split('\n')
    lines=[l for l in head if l.startswith(';') and 'kernarg layout' in l.lower() or l.startswith(';   offset')]
    for label,gen,lds in kernels:
        lines.append(f'; @launch kernel={label} grid=(256,1,1) block=(512,1,1) lds={lds}')
    lines.append('.amdgcn_target "amdgcn-amd-amdhsa--gfx950"')
    lines.append('.text')
    descs=[]; seen=set()
    for label,gen,lds in kernels:
        if label in seen: continue
        seen.add(label)
        t,d = gen(label)
        lines.append(t); descs.append(d)
    lines.append('.section .rodata,"a"')
    for d in descs:
        lines.append('.p2align 6'); lines.append(d)
    open(path,'w').write('\n'.join(lines)+'\n')
if __name__=='__main__':
    ks=[('k0_kernel',k0.gen_k0,0),('k1_kernel',k1.gen_k1,k1.LDS_K1)]
    build(ks, sys.argv[1])
```

```python
from asmlib import Kern
MB = 1<<20
ARG = dict(q=0,k=8,v=16,shift=24,ssmk=32,ssmd=40,x=48,wqkv=56,wphi=64,wo=72,out=80,dbg=88,ws=96)
WS_UT=0; WS_Y=4*MB; WS_WQ=8*MB; WS_WO=14*MB; WS_X1=16*MB; WS_X2=20*MB; WS_X3=24*MB; WS_XN=28*MB; WS_O=32*MB
WS_PART=36*MB; PART_STRIDE=8448; PART_LAYER=32*8*PART_STRIDE
WS_FLAG=44*MB; FLAG_BYTES=2*32*128
NAME='interleave_layers__ssm_conv_h3__linear_kernel_hedgehog__prompt'

def srd(k, s, lo, hi, size, off=0):
    if off:
        k(f's_add_u32 s{s}, s{lo}, {off}')
        k(f's_addc_u32 s{s+1}, s{hi}, 0')
    else:
        k(f's_mov_b32 s{s}, s{lo}')
        k(f's_mov_b32 s{s+1}, s{hi}')
    k(f's_mov_b32 s{s+2}, {size}')
    k(f's_mov_b32 s{s+3}, 0x20000')

def header(k, name, nwg):
    k(f'.globl {name}')
    k('.p2align 8')
    k(f'.type {name},@function')
    k(f'{name}:')
    k(f's_cmp_ge_u32 s2, {nwg}')
    k(f's_cbranch_scc1 {name}_end')

def footer(k, name):
    k(f'{name}_end:')
    k('s_endpgm')

def descriptor(name, vgpr, sgpr=96):
    acc = (vgpr+3)//4*4
    return f'''.amdhsa_kernel {name}
  .amdhsa_next_free_vgpr {vgpr}
  .amdhsa_next_free_sgpr {sgpr}
  .amdhsa_accum_offset {acc}
  .amdhsa_group_segment_fixed_size 0
  .amdhsa_kernarg_size 104
  .amdhsa_user_sgpr_count 2
  .amdhsa_user_sgpr_kernarg_segment_ptr 1
  .amdhsa_system_sgpr_workgroup_id_x 1
.end_amdhsa_kernel'''
```

```python
from common import *
def gen_k0(name):
    k = Kern()
    header(k, name, 256)
    k(f'''
    s_load_dwordx2 s[4:5], s[0:1], {ARG['k']}
    s_load_dwordx2 s[6:7], s[0:1], {ARG['v']}
    s_load_dwordx2 s[24:25], s[0:1], {ARG['shift']}
    s_load_dwordx2 s[26:27], s[0:1], {ARG['ws']}
    v_and_b32 v1, 63, v0
    v_lshrrev_b32 v2, 6, v0
    v_and_b32 v3, 7, v1
    v_lshrrev_b32 v4, 3, v1
    s_lshr_b32 s28, s2, 2
    s_and_b32 s29, s2, 3
    s_lshl_b32 s28, s28, 5
    s_lshl_b32 s29, s29, 8
    v_lshlrev_b32 v5, 5, v2
    v_lshl_add_u32 v5, v4, 2, v5
    v_add_u32 v5, s29, v5
    v_lshlrev_b32 v6, 2, v3
    v_add_u32 v6, s28, v6
    v_subrev_u32 v7, 3, v6
    v_lshlrev_b32 v7, 11, v7
    v_lshl_add_u32 v8, v5, 1, v7
    s_mov_b32 s30, 0xffff0000
    s_waitcnt lgkmcnt(0)
    ''')
    srd(k, 8, 4, 5, 4*MB)
    srd(k, 12, 6, 7, 4*MB)
    srd(k, 16, 24, 25, 8192)
    srd(k, 20, 26, 27, 4*MB, WS_UT)
    for i in range(7):
        k(f'v_add_u32 v{10+i}, {2048*i}, v8')
    k('v_lshlrev_b32 v9, 3, v5')
    k('buffer_load_dwordx4 v[42:45], v9, s[16:19], 0 offen')
    k('buffer_load_dwordx4 v[46:49], v9, s[16:19], 0 offen offset:16')
    for i in range(7):
        k(f'buffer_load_dwordx2 v[{20+2*i}:{21+2*i}], v{10+i}, s[8:11], 0 offen')
    for j in range(4):
        k(f'buffer_load_dwordx2 v[{34+2*j}:{35+2*j}], v{13+j}, s[12:15], 0 offen')
    k(f'''
    s_cmp_lg_u32 s2, 0
    s_cbranch_scc1 {name}_noz
    ''')
    srd(k, 32, 26, 27, FLAG_BYTES, WS_FLAG)
    k(f'''
    v_lshlrev_b32 v50, 4, v0
    v_mov_b32 v52, 0
    v_mov_b32 v53, 0
    v_mov_b32 v54, 0
    v_mov_b32 v55, 0
    buffer_store_dwordx4 v[52:55], v50, s[32:35], 0 offen
    s_nop 1
    {name}_noz:
    ''')
    k('s_waitcnt vmcnt(11)' )
    W = lambda c,t: 60+4*c+t
    for c in range(4):
        for h in range(2):
            src = 42+2*c+h
            k(f'v_lshlrev_b32 v{W(c,2*h)}, 16, v{src}')
            k(f'v_and_b32 v{W(c,2*h+1)}, s30, v{src}')
    k('s_waitcnt vmcnt(0)')
    K = lambda i,c: 76+4*i+c
    V = lambda j,c: 104+4*j+c
    for i in range(7):
        for h in range(2):
            k(f'v_lshlrev_b32 v{K(i,2*h)}, 16, v{20+2*i+h}')
            k(f'v_and_b32 v{K(i,2*h+1)}, s30, v{20+2*i+h}')
    for j in range(4):
        for h in range(2):
            k(f'v_lshlrev_b32 v{V(j,2*h)}, 16, v{34+2*j+h}')
            k(f'v_and_b32 v{V(j,2*h+1)}, s30, v{34+2*j+h}')
    A = lambda j,c: 120+4*j+c
    P = lambda j,c: 136+4*j+c
    T = lambda j,h: 152+2*j+h
    def rnd(R):
        for j in range(4):
            for h in range(2):
                k(f'v_cvt_pk_bf16_f32 v{T(j,h)}, v{R(j,2*h)}, v{R(j,2*h+1)}')
        for j in range(4):
            for h in range(2):
                k(f'v_lshlrev_b32 v{R(j,2*h)}, 16, v{T(j,h)}')
                k(f'v_and_b32 v{R(j,2*h+1)}, s30, v{T(j,h)}')
    for j in range(4):
        for c in range(4):
            k(f'v_mul_f32 v{A(j,c)}, v{K(j,c)}, v{W(c,3)}')
    rnd(A)
    for t in range(1,4):
        for j in range(4):
            for c in range(4):
                k(f'v_mul_f32 v{P(j,c)}, v{K(j+t,c)}, v{W(c,3-t)}')
        rnd(P)
        for j in range(4):
            for c in range(4):
                k(f'v_add_f32 v{A(j,c)}, v{A(j,c)}, v{P(j,c)}')
        rnd(A)
    for j in range(4):
        for c in range(4):
            k(f'v_mul_f32 v{A(j,c)}, v{A(j,c)}, v{V(j,c)}')
    for c in range(4):
        k(f'v_cvt_pk_bf16_f32 v{20+2*c}, v{A(0,c)}, v{A(1,c)}')
        k(f'v_cvt_pk_bf16_f32 v{21+2*c}, v{A(2,c)}, v{A(3,c)}')
    k('v_lshlrev_b32 v9, 12, v5')
    k('v_lshl_add_u32 v9, v6, 1, v9')
    for c in range(4):
        k(f's_mov_b32 s31, {4096*c}')
        k(f'buffer_store_dwordx2 v[{20+2*c}:{21+2*c}], v9, s[20:23], s31 offen')
    footer(k, name)
    return k.finish(), descriptor(name, 160)
```

```python
from common import *
ACH = 16640
ACP = 4160
BBASE = 4*ACH
BQ = 1600
BCH = 4*BQ
LDS_K1 = BBASE + 4*BCH

def gen_k1(name):
    k = Kern()
    header(k, name, 256)
    k(f'''
    s_load_dwordx2 s[4:5], s[0:1], {ARG['ssmk']}
    s_load_dwordx2 s[6:7], s[0:1], {ARG['ssmd']}
    s_load_dwordx2 s[24:25], s[0:1], {ARG['ws']}
    s_load_dwordx2 s[26:27], s[0:1], {ARG['wqkv']}
    s_load_dwordx2 s[28:29], s[0:1], {ARG['wo']}
    v_and_b32 v1, 63, v0
    v_lshrrev_b32 v2, 6, v0
    s_nop 0
    v_readfirstlane_b32 s33, v2
    s_and_b32 s34, s33, 3
    s_lshr_b32 s35, s33, 2
    s_lshl_b32 s36, s2, 2
    s_add_u32 s36, s36, s34
    s_waitcnt lgkmcnt(0)
    ''')
    srd(k, 8, 4, 5, 4*MB)
    srd(k, 12, 24, 25, 4*MB, WS_UT)
    srd(k, 16, 24, 25, 4*MB, WS_Y)
    k(f'''
    s_lshr_b32 s37, s36, 1
    s_lshl_b32 s37, s37, 2
    s_load_dword s38, s[6:7], s37
    ''')
    k(f'''
    s_lshl_b32 s39, s36, 12
    s_lshl_b32 s40, s35, 11
    s_add_u32 s40, s40, s39
    v_lshlrev_b32 v3, 5, v1
    v_add_u32 v4, s40, v3
    v_subrev_u32 v5, 8, v4
    v_or_b32 v6, s35, v1
    v_cmp_eq_u32 vcc, 0, v6
    v_mov_b32 v7, 0x7ffffff0
    v_cndmask_b32 v5, v5, v7, vcc
    buffer_load_dwordx2 v[10:11], v5, s[8:11], 0 offen
    buffer_load_dwordx4 v[12:15], v4, s[8:11], 0 offen
    buffer_load_dwordx4 v[16:19], v4, s[8:11], 0 offen offset:16
    ''')
    k(f'''
    v_lshlrev_b32 v8, 6, v1
    v_add_u32 v8, s39, v8
    s_lshl_b32 s41, s35, 5
    v_add_u32 v8, s41, v8
    s_mul_i32 s42, s34, {BCH}
    s_mul_i32 s43, s35, {2*BQ}
    s_add_u32 s42, s42, s43
    s_add_u32 s42, s42, {BBASE}
    s_add_u32 m0, s42, 512
    s_mov_b32 s44, 16
    buffer_load_dwordx4 v8, s[12:15], 0 offen lds
    s_add_u32 m0, s42, {512+BQ}
    s_nop 0
    buffer_load_dwordx4 v8, s[12:15], s44 offen lds
    ''')
    k(f'''
    v_mov_b32 v20, 0
    v_mov_b32 v21, 0
    v_lshlrev_b32 v9, 3, v1
    v_add_u32 v9, s42, v9
    ds_write_b64 v9, v[20:21]
    ds_write_b64 v9, v[20:21] offset:{BQ}
    s_mul_i32 s45, s34, {ACH}
    v_lshrrev_b32 v22, 4, v1
    v_mul_u32_u24 v22, {ACP}, v22
    v_and_b32 v23, 15, v1
    v_lshl_add_u32 v22, v23, 2, v22
    v_add_u32 v22, s45, v22
    ds_write_b32 v22, v20
    ''')
    k('s_waitcnt vmcnt(2)')
    k(f'''
    s_lshl_b32 s46, s35, 11
    s_add_u32 s46, s46, s45
    s_add_u32 s46, s46, 64
    v_add_u32 v24, s46, v3
    ''')
    F=26
    for i in range(8): k(f'v_mov_b32 v{F+i}, v{11+i}')
    G=34
    for i in range(9): k(f'v_alignbit_b32 v{G+i}, v{11+i}, v{10+i}, 16')
    H=44
    for i in range(8): k(f'v_alignbit_b32 v{H+i}, v{12+i}, v{11+i}, 16')
    k(f'''
    ds_write_b128 v24, v[12:15]
    ds_write_b128 v24, v[16:19] offset:16
    ds_write_b128 v24, v[{H}:{H+3}] offset:{ACP}
    ds_write_b128 v24, v[{H+4}:{H+7}] offset:{ACP+16}
    ds_write_b128 v24, v[{F}:{F+3}] offset:{2*ACP}
    ds_write_b128 v24, v[{F+4}:{F+7}] offset:{2*ACP+16}
    ds_write_b128 v24, v[{G}:{G+3}] offset:{3*ACP}
    ds_write_b128 v24, v[{G+4}:{G+7}] offset:{3*ACP+16}
    s_waitcnt vmcnt(0) lgkmcnt(0)
    s_barrier
    s_cmp_ge_u32 s33, 4
    s_cbranch_scc1 {name}_prep
    ''')
    k(f'''
    v_lshrrev_b32 v3, 4, v1
    v_and_b32 v4, 1, v3
    v_lshrrev_b32 v5, 1, v3
    v_bfe_u32 v6, v1, 2, 2
    v_and_b32 v7, 3, v1
    v_mul_u32_u24 v8, {ACP}, v6
    v_lshl_add_u32 v8, v4, 5, v8
    v_lshlrev_b32 v9, 4, v5
    v_sub_u32 v8, v8, v9
    v_lshl_add_u32 v8, v7, 3, v8
    s_add_u32 s46, s45, 24
    v_add_u32 v2, s46, v8
    ''')
    k(f'''
    v_lshrrev_b32 v5, 5, v1
    v_and_b32 v4, 31, v1
    v_mul_u32_u24 v8, {BQ}, v5
    v_lshl_add_u32 v8, v4, 4, v8
    s_mul_i32 s47, s34, {BCH}
    s_add_u32 s47, s47, {BBASE}
    v_add_u32 v3, s47, v8
    ''')
    VA, VB = 2, 3
    ACC0, ACC1 = 8, 24
    for i in range(32): k(f'v_mov_b32 v{8+i}, 0')
    def FR(st, idx): return 40 + 32*st + 4*idx
    def issue(step, st):
        for idx,(kap,e0) in enumerate([(step,0),(step,16),(32+step,0),(32+step,16)]):
            r = FR(st, idx)
            for jq in range(2):
                off = 64*kap - 2*e0 - 8*jq + 40
                k(f'ds_read_b64_tr_b16 v[{r+2*jq}:{r+2*jq+1}], v{VA} offset:{off}')
        for idx,(t,e0) in enumerate([(0,0),(0,16),(1,0),(1,16)]):
            r = FR(st, 4+idx)
            off = (e0//8)*BQ + (32 + 32*t - step)*16
            k(f'ds_read_b128 v[{r}:{r+3}], v{VB} offset:{off}')
    def mf(acc, a, b):
        k(f'v_mfma_f32_32x32x16_bf16 v[{acc}:{acc+15}], v[{a}:{a+3}], v[{b}:{b+3}], v[{acc}:{acc+15}]')
    issue(0, 0)
    for step in range(32):
        st = step & 1
        if step < 31:
            issue(step+1, st^1)
            k('s_waitcnt lgkmcnt(12)')
        else:
            k('s_waitcnt lgkmcnt(0)')
        f = lambda i: FR(st, i)
        mf(ACC0, f(0), f(4)); mf(ACC1, f(0), f(6))
        mf(ACC0, f(1), f(5)); mf(ACC1, f(1), f(7))
        mf(ACC1, f(2), f(4)); mf(ACC1, f(3), f(5))
    k(f'''
    s_waitcnt lgkmcnt(0)
    s_and_b32 s48, s36, 1
    s_lshl_b32 s48, s48, 4
    s_lshr_b32 s38, s38, s48
    s_lshl_b32 s38, s38, 16
    s_mov_b32 s30, 0xffff0000
    v_lshrrev_b32 v5, 5, v1
    v_and_b32 v4, 31, v1
    v_lshlrev_b32 v6, 4, v4
    v_lshl_add_u32 v6, v5, 3, v6
    v_add_u32 v6, s47, v6
    ''')
    for t in range(2):
        for g in range(4):
            r = 40 + 2*(4*t+g)
            k(f'ds_read_b64 v[{r}:{r+1}], v6 offset:{g*BQ + (32+32*t)*16}')
    for t in range(2):
        acc = ACC0 if t==0 else ACC1
        for p in range(8):
            k(f'v_cvt_pk_bf16_f32 v{56+8*t+p}, v{acc+2*p}, v{acc+2*p+1}')
    for t in range(2):
        acc = ACC0 if t==0 else ACC1
        for p in range(8):
            k(f'v_lshlrev_b32 v{acc+2*p}, 16, v{56+8*t+p}')
            k(f'v_and_b32 v{acc+2*p+1}, s30, v{56+8*t+p}')
    k('s_waitcnt lgkmcnt(0)')
    for i in range(16):
        k(f'v_lshlrev_b32 v{72+2*i}, 16, v{40+i}')
        k(f'v_and_b32 v{73+2*i}, s30, v{40+i}')
    for i in range(32): k(f'v_mul_f32 v{72+i}, s38, v{72+i}')
    for i in range(16): k(f'v_cvt_pk_bf16_f32 v{40+i}, v{72+2*i}, v{73+2*i}')
    for i in range(16):
        k(f'v_lshlrev_b32 v{72+2*i}, 16, v{40+i}')
        k(f'v_and_b32 v{73+2*i}, s30, v{40+i}')
    for i in range(32): k(f'v_add_f32 v{72+i}, v{8+i}, v{72+i}')
    for i in range(16): k(f'v_cvt_pk_bf16_f32 v{40+i}, v{72+2*i}, v{73+2*i}')
    for t in range(2):
        for g in range(4):
            r = 40 + 2*(4*t+g)
            k(f'ds_write_b64 v6, v[{r}:{r+1}] offset:{g*BQ + (32+32*t)*16}')
    k(f's_branch {name}_join')
    k(f'{name}_prep:')
    srd(k, 48, 26, 27, 6*MB)
    srd(k, 52, 28, 29, 2*MB)
    srd(k, 56, 24, 25, 6*MB, WS_WQ)
    srd(k, 60, 24, 25, 2*MB, WS_WO)
    k(f'''
    s_lshl_b32 s64, s2, 2
    s_add_u32 s64, s64, s34
    s_cmp_ge_u32 s64, 768
    s_cbranch_scc1 {name}_prep_wo
    s_mul_i32 s65, s64, 43691
    s_lshr_b32 s65, s65, 18
    s_mul_i32 s66, s65, 6
    s_sub_u32 s66, s64, s66
    s_mul_i32 s67, s65, {8*6144}
    s_lshl_b32 s68, s66, 10
    s_add_u32 s67, s67, s68
    v_lshlrev_b32 v3, 4, v1
    v_add_u32 v3, s67, v3
    ''')
    for j in range(8):
        k(f's_mov_b32 s69, {j*6144}')
        k(f'buffer_load_dwordx4 v[{8+4*j}:{11+4*j}], v3, s[48:51], s69 offen')
    k(f'''
    s_and_b32 s70, s66, 1
    s_lshl_b32 s70, s70, 4
    v_lshrrev_b32 v4, 2, v1
    v_add_u32 v4, s70, v4
    s_mov_b32 s71, 196608
    v_mul_lo_u32 v4, s71, v4
    s_lshr_b32 s72, s65, 1
    s_mul_i32 s72, s72, 3072
    s_lshr_b32 s73, s66, 1
    s_lshl_b32 s73, s73, 10
    s_add_u32 s72, s72, s73
    s_and_b32 s73, s65, 1
    s_lshl_b32 s73, s73, 9
    s_add_u32 s72, s72, s73
    v_and_b32 v5, 3, v1
    v_lshl_add_u32 v4, v5, 7, v4
    v_add_u32 v4, s72, v4
    ''')
    def transpose_store(dsrd):
        k('s_mov_b32 s74, 0x05040100')
        k('s_mov_b32 s75, 0x07060302')
        k('s_waitcnt vmcnt(0)')
        for m in range(8):
            for p in range(4):
                sel = 's75' if m&1 else 's74'
                k(f'v_perm_b32 v{40+4*m+p}, v{8+4*(2*p+1)+(m>>1)}, v{8+4*(2*p)+(m>>1)}, {sel}')
        for m in range(8):
            k(f'buffer_store_dwordx4 v[{40+4*m}:{43+4*m}], v4, s[{dsrd}:{dsrd+3}], 0 offen offset:{16*m}')
    transpose_store(56)
    k(f's_branch {name}_join')
    k(f'{name}_prep_wo:')
    k(f'''
    s_sub_u32 s64, s64, 768
    s_lshr_b32 s65, s64, 1
    s_and_b32 s66, s64, 1
    s_mul_i32 s67, s65, {8*2048}
    s_lshl_b32 s68, s66, 10
    s_add_u32 s67, s67, s68
    v_lshlrev_b32 v3, 4, v1
    v_add_u32 v3, s67, v3
    ''')
    for j in range(8):
        k(f's_mov_b32 s69, {j*2048}')
        k(f'buffer_load_dwordx4 v[{8+4*j}:{11+4*j}], v3, s[52:55], s69 offen')
    k(f'''
    s_lshl_b32 s70, s66, 3
    v_lshrrev_b32 v4, 3, v1
    v_add_u32 v4, s70, v4
    v_lshlrev_b32 v4, 17, v4
    v_bfe_u32 v5, v1, 2, 1
    v_lshl_add_u32 v4, v5, 10, v4
    v_and_b32 v5, 3, v1
    v_lshl_add_u32 v4, v5, 7, v4
    s_lshr_b32 s72, s65, 1
    s_lshl_b32 s72, s72, 11
    s_and_b32 s73, s65, 1
    s_lshl_b32 s73, s73, 9
    s_add_u32 s72, s72, s73
    v_add_u32 v4, s72, v4
    ''')
    transpose_store(60)
    k(f'{name}_join:')
    k(f'''
    s_waitcnt lgkmcnt(0)
    s_barrier
    v_lshrrev_b32 v3, 3, v0
    v_bfe_u32 v4, v0, 1, 2
    v_and_b32 v5, 1, v0
    v_mul_u32_u24 v6, {BQ}, v4
    v_lshl_add_u32 v6, v3, 4, v6
    v_lshl_add_u32 v6, v5, 3, v6
    v_add_u32 v6, {BBASE+512}, v6
    ''')
    for ch in range(4):
        k(f'ds_read_b64 v[{8+2*ch}:{9+2*ch}], v6 offset:{ch*BCH}')
    k(f'''
    s_mov_b32 s74, 0x05040100
    s_mov_b32 s75, 0x07060302
    s_lshl_b32 s76, s2, 14
    v_lshlrev_b32 v7, 5, v0
    v_add_u32 v7, s76, v7
    s_waitcnt lgkmcnt(0)
    ''')
    for i in range(4):
        sel = 's75' if i&1 else 's74'
        dw = i>>1
        k(f'v_perm_b32 v{16+2*i}, v{8+2*1+dw}, v{8+2*0+dw}, {sel}')
        k(f'v_perm_b32 v{17+2*i}, v{8+2*3+dw}, v{8+2*2+dw}, {sel}')
    k('buffer_store_dwordx4 v[16:19], v7, s[16:19], 0 offen')
    k('buffer_store_dwordx4 v[20:23], v7, s[16:19], 0 offen offset:16')
    footer(k, name)
    return k.finish(), descriptor(name, 112)
```

```python
from common import *
from track import Q
SLAB=24576
LDS_KA=3*SLAB
RED_Z=65536
KVA=67584
ZA=71680
SPIN_MAX=200000

def softmax_pair(k, src, EP, EN, outP, outN, tmp):
    mx,mn,t0,t1,sp,sn,t2,t3 = [tmp+i for i in range(8)]
    k(f'v_max3_f32 v{mx}, v{src}, v{src+1}, v{src+2}')
    k(f'v_min3_f32 v{mn}, v{src}, v{src+1}, v{src+2}')
    for i in range(3,15,2):
        k(f'v_max3_f32 v{mx}, v{mx}, v{src+i}, v{src+i+1}')
        k(f'v_min3_f32 v{mn}, v{mn}, v{src+i}, v{src+i+1}')
    k(f'v_max_f32 v{mx}, v{mx}, v{src+15}')
    k(f'v_min_f32 v{mn}, v{mn}, v{src+15}')
    k(f'v_mov_b32 v{t0}, v{mx}')
    k(f'v_mov_b32 v{t1}, v{mn}')
    k(f'v_permlane32_swap_b32 v{mx}, v{t0}')
    k(f'v_permlane32_swap_b32 v{mn}, v{t1}')
    k(f'v_max_f32 v{mx}, v{mx}, v{t0}')
    k(f'v_min_f32 v{mn}, v{mn}, v{t1}')
    k(f'v_mul_f32 v{mx}, s41, v{mx}')
    k(f'v_mul_f32 v{mn}, s40, v{mn}')
    for i in range(16):
        k(f'v_fma_f32 v{EP+i}, v{src+i}, s40, v{mx}')
        k(f'v_fma_f32 v{EN+i}, v{src+i}, s41, v{mn}')
    for i in range(16):
        k(f'v_exp_f32 v{EP+i}, v{EP+i}')
        k(f'v_exp_f32 v{EN+i}, v{EN+i}')
    k(f'v_add_f32 v{sp}, v{EP}, v{EP+1}')
    k(f'v_add_f32 v{sn}, v{EN}, v{EN+1}')
    k(f'v_add_f32 v{t2}, v{EP+2}, v{EP+3}')
    k(f'v_add_f32 v{t3}, v{EN+2}, v{EN+3}')
    for i in range(4,16,2):
        k(f'v_add_f32 v{sp}, v{sp}, v{EP+i}')
        k(f'v_add_f32 v{sn}, v{sn}, v{EN+i}')
        k(f'v_add_f32 v{t2}, v{t2}, v{EP+i+1}')
        k(f'v_add_f32 v{t3}, v{t3}, v{EN+i+1}')
    k(f'v_add_f32 v{sp}, v{sp}, v{t2}')
    k(f'v_add_f32 v{sn}, v{sn}, v{t3}')
    k(f'v_mov_b32 v{t0}, v{sp}')
    k(f'v_mov_b32 v{t1}, v{sn}')
    k(f'v_permlane32_swap_b32 v{sp}, v{t0}')
    k(f'v_permlane32_swap_b32 v{sn}, v{t1}')
    k(f'v_add_f32 v{sp}, v{sp}, v{t0}')
    k(f'v_add_f32 v{sn}, v{sn}, v{t1}')
    k(f'v_rcp_f32 v{sp}, v{sp}')
    k(f'v_rcp_f32 v{sn}, v{sn}')
    for i in range(16):
        k(f'v_mul_f32 v{EP+i}, v{EP+i}, v{sp}')
        k(f'v_mul_f32 v{EN+i}, v{EN+i}, v{sn}')
    for p in range(8):
        k(f'v_cvt_pk_bf16_f32 v{outP+p}, v{EP+2*p}, v{EP+2*p+1}')
        k(f'v_cvt_pk_bf16_f32 v{outN+p}, v{EN+2*p}, v{EN+2*p+1}')

def mfma(k, d, a, b, c=None):
    cs = f'v[{d}:{d+15}]' if c is None else (str(c) if c==0 else f'v[{c}:{c+15}]')
    k(f'v_mfma_f32_32x32x16_bf16 v[{d}:{d+15}], v[{a}:{a+3}], v[{b}:{b+3}], {cs}')

def gen_ka(name, layer):
    k = Kern()
    header(k, name, 256)
    k(f'''
    s_load_dwordx2 s[4:5], s[0:1], {ARG['ws']}
    s_load_dwordx2 s[6:7], s[0:1], {ARG['wphi']}
    v_and_b32 v1, 63, v0
    v_lshrrev_b32 v2, 6, v0
    s_and_b32 s36, s2, 7
    s_lshr_b32 s37, s2, 3
    v_readfirstlane_b32 s33, v2
    s_and_b32 s34, s36, 1
    s_lshl_b32 s34, s34, 2
    s_and_b32 s38, s37, 3
    s_add_u32 s34, s34, s38
    s_lshr_b32 s35, s36, 1
    s_lshl_b32 s35, s35, 3
    s_lshr_b32 s38, s37, 2
    s_add_u32 s35, s35, s38
    s_waitcnt lgkmcnt(0)
    ''')
    srd(k, 8, 4, 5, 4*MB, WS_XN)
    srd(k, 12, 4, 5, 6*MB, WS_WQ)
    srd(k, 16, 4, 5, 4*MB, WS_O)
    srd(k, 20, 4, 5, PART_LAYER, WS_PART + layer*PART_LAYER)
    srd(k, 24, 4, 5, 32*128, WS_FLAG + layer*32*128)
    srd(k, 28, 6, 7, 65536)
    vm = Q(k,'vmcnt',63); lg = Q(k,'lgkmcnt',15)
    k(f'''
    v_and_b32 v5, 31, v1
    v_lshrrev_b32 v6, 5, v1
    s_lshl_b32 s38, s34, 8
    s_lshl_b32 s39, s33, 5
    s_add_u32 s38, s38, s39
    v_lshl_add_u32 v2, v6, 11, v5
    v_add_u32 v2, s38, v2
    v_lshlrev_b32 v2, 4, v2
    v_lshlrev_b32 v3, 4, v1
    s_mul_i32 s42, s35, 196608
    s_mul_i32 s43, s33, 3072
    s_add_u32 s42, s42, s43
    v_add_u32 v4, s42, v3
    v_add_u32 v228, {2*SLAB}, v3
    ''')
    def dma(slab):
        k(f's_add_u32 m0, s43, {(slab%3)*SLAB}')
        k(f's_mov_b32 s44, {slab*SLAB}')
        for t in range(3):
            k(f'buffer_load_dwordx4 v4, s[12:15], s44 offen offset:{t*1024} lds')
            vm.issue(('dma',slab))
    XB = lambda s: 56+4*(s%8)
    def xload(step):
        k(f's_mov_b32 s45, {step*65536}')
        k(f'buffer_load_dwordx4 v[{XB(step)}:{XB(step)+3}], v2, s[8:11], s45 offen')
        vm.issue(('x',step))
    dma(0)
    for s in range(4): xload(s)
    dma(1)
    for s in range(4,8): xload(s)
    k(f'''
    s_lshl_b32 s46, s35, 11
    v_lshlrev_b32 v7, 8, v6
    v_lshl_add_u32 v7, v5, 1, v7
    v_add_u32 v7, s46, v7
    ''')
    for i in range(2):
        for j in range(8):
            d = 16*i + 8*(j>>2) + (j&3)
            k(f'buffer_load_ushort v{128+8*i+j}, v7, s[28:31], 0 offen offset:{d*64}')
            vm.issue('wphi')
    k('v_lshlrev_b32 v8, 2, v6')
    k('v_sub_u32 v8, v5, v8')
    for i in range(2):
        for p in range(4):
            c0 = 16*i + 8*(p>>1) + 2*(p&1)
            r = 120+4*i+p
            k(f'v_cmp_eq_u32 vcc, {c0}, v8')
            k(f'v_mov_b32 v9, 0x3f80')
            k(f'v_cndmask_b32 v{r}, 0, v9, vcc')
            k(f'v_cmp_eq_u32 vcc, {c0+1}, v8')
            k(f'v_mov_b32 v9, 0x3f800000')
            k(f'v_cndmask_b32 v10, 0, v9, vcc')
            k(f'v_or_b32 v{r}, v{r}, v10')
    ACQ, ACK, ACV = 8, 24, 40
    for i in range(48): k(f'v_mov_b32 v{8+i}, 0')
    k('s_mov_b32 s40, 0x3fb8aa3b')
    k('s_mov_b32 s41, 0xbfb8aa3b')
    WB = lambda st,t: 88+12*st+4*t
    def wread(step):
        slab, j = step//8, step%8
        st = step&1
        for t in range(3):
            if slab%3==2: k(f'ds_read_b128 v[{WB(st,t)}:{WB(st,t)+3}], v228 offset:{j*3072 + t*1024}')
            else: k(f'ds_read_b128 v[{WB(st,t)}:{WB(st,t)+3}], v3 offset:{(slab%3)*SLAB + j*3072 + t*1024}')
            lg.issue(('w',step))
    vm.wait(('dma',0))
    k('s_barrier')
    wread(0)
    for step in range(64):
        slab, j = step//8, step%8
        if step+1 < 64: wread(step+1)
        lg.wait(('w',step))
        vm.wait(('x',step))
        st = step&1; X = XB(step)
        mfma(k, ACQ, WB(st,0), X)
        mfma(k, ACK, WB(st,1), X)
        mfma(k, ACV, X, WB(st,2))
        if step+8 < 64: xload(step+8)
        if j==3 and slab+1 < 8:
            vm.wait(('dma',slab+1))
            k('s_barrier')
            if slab+2 < 8: dma(slab+2)
    vm.drain()
    for i in range(2):
        for p in range(4):
            k(f'v_lshl_or_b32 v{112+4*i+p}, v{128+8*i+2*p+1}, 16, v{128+8*i+2*p}')
    k('s_barrier')
    QP = 232
    for p in range(8): k(f'v_cvt_pk_bf16_f32 v{QP+p}, v{8+2*p}, v{8+2*p+1}')
    KP, VP, PK, EP, EN = 56, 64, 72, 132, 148
    for p in range(8): k(f'v_cvt_pk_bf16_f32 v{KP+p}, v{ACK+2*p}, v{ACK+2*p+1}')
    mfma(k, PK, 112, KP, 0)
    mfma(k, PK, 116, KP+4)
    for p in range(8): k(f'v_cvt_pk_bf16_f32 v{VP+p}, v{ACV+2*p}, v{ACV+2*p+1}')
    for i in range(4): k(f'v_mov_b32 v{128+i}, 0x3f803f80')
    PHP, PHN, TMP = 88, 96, 104
    softmax_pair(k, PK, EP, EN, PHP, PHN, TMP)
    KVP, KVN, ZP, ZN = 164, 180, 196, 212
    T1, T2, PT1, PT2 = 132, 148, 72, 80
    mfma(k, T1, PHP, 120, 0)
    mfma(k, T2, PHN, 120, 0)
    mfma(k, T1, PHP+4, 124)
    mfma(k, T2, PHN+4, 124)
    for p in range(8): k(f'v_cvt_pk_bf16_f32 v{PT1+p}, v{T1+2*p}, v{T1+2*p+1}')
    for p in range(8): k(f'v_cvt_pk_bf16_f32 v{PT2+p}, v{T2+2*p}, v{T2+2*p+1}')
    mfma(k, KVP, PT1, VP, 0)
    mfma(k, ZP, PT1, 128, 0)
    mfma(k, KVN, PT2, VP, 0)
    mfma(k, ZN, PT2, 128, 0)
    mfma(k, KVP, PT1+4, VP+4)
    mfma(k, ZP, PT1+4, 128)
    mfma(k, KVN, PT2+4, VP+4)
    mfma(k, ZN, PT2+4, 128)
    k('s_lshl_b32 s46, s33, 13')
    k('v_add_u32 v7, s46, v3')
    for fz,base in enumerate((KVP,KVN)):
        for g in range(4):
            k(f'ds_write_b128 v7, v[{base+4*g}:{base+4*g+3}] offset:{(fz*4+g)*1024}')
    k(f'''
    s_lshl_b32 s46, s33, 8
    s_add_u32 s46, s46, {RED_Z}
    v_lshlrev_b32 v7, 4, v6
    v_add_u32 v7, s46, v7
    s_mov_b32 exec_lo, 1
    s_mov_b32 exec_hi, 1
    ''')
    for fz,base in enumerate((ZP,ZN)):
        for g in range(4):
            k(f'ds_write_b128 v7, v[{base+4*g}:{base+4*g+3}] offset:{fz*128+g*32}')
    k('s_mov_b64 exec, -1')
    k('s_waitcnt lgkmcnt(0)')
    k('s_barrier')
    k('s_lshl_b32 s46, s33, 10')
    k('v_add_u32 v7, s46, v3')
    for w in range(8):
        k(f'ds_read_b128 v[{164+4*w}:{167+4*w}], v7 offset:{w*8192}')
    k(f'''
    s_lshl_b32 s47, s35, 3
    s_add_u32 s47, s47, s34
    s_mul_i32 s47, s47, {PART_STRIDE}
    v_add_u32 v8, s47, v7
    ''')
    def sum8(base):
        for i in range(4):
            k(f'v_add_f32 v{base+i}, v{base+i}, v{base+4+i}')
            k(f'v_add_f32 v{base+8+i}, v{base+8+i}, v{base+12+i}')
            k(f'v_add_f32 v{base+16+i}, v{base+16+i}, v{base+20+i}')
            k(f'v_add_f32 v{base+24+i}, v{base+24+i}, v{base+28+i}')
        for i in range(4):
            k(f'v_add_f32 v{base+i}, v{base+i}, v{base+8+i}')
            k(f'v_add_f32 v{base+16+i}, v{base+16+i}, v{base+24+i}')
        for i in range(4):
            k(f'v_add_f32 v{base+i}, v{base+i}, v{base+16+i}')
    k('s_waitcnt lgkmcnt(0)')
    sum8(164)
    k('buffer_store_dwordx4 v[164:167], v8, s[20:23], 0 offen sc1')
    k(f'''
    s_cmp_lg_u32 s33, 0
    s_cbranch_scc1 {name}_noz
    v_and_b32 v9, 15, v1
    v_lshlrev_b32 v9, 4, v9
    v_add_u32 v11, {RED_Z}, v9
    ''')
    for w in range(8):
        k(f'ds_read_b128 v[{196+4*w}:{199+4*w}], v11 offset:{w*256}')
    k('s_waitcnt lgkmcnt(0)')
    sum8(196)
    k(f'''
    v_add_u32 v9, s47, v9
    v_add_u32 v9, 8192, v9
    s_mov_b32 exec_lo, 0xffff
    s_mov_b32 exec_hi, 0
    buffer_store_dwordx4 v[196:199], v9, s[20:23], 0 offen sc1
    s_mov_b64 exec, -1
    {name}_noz:
    s_waitcnt vmcnt(0)
    s_barrier
    s_cmp_lg_u32 s33, 0
    s_cbranch_scc1 {name}_noflag
    s_lshl_b32 s48, s35, 7
    s_lshl_b32 s49, s34, 2
    s_add_u32 s48, s48, s49
    v_mov_b32 v9, s48
    v_mov_b32 v10, 1
    s_mov_b32 exec_lo, 1
    s_mov_b32 exec_hi, 0
    buffer_store_dword v10, v9, s[24:27], 0 offen sc1
    s_mov_b64 exec, -1
    {name}_noflag:
    ''')
    mfma(k, PK, 112, QP, 0)
    mfma(k, PK, 116, QP+4)
    QHP, QHN = 88, 96
    softmax_pair(k, PK, EP, EN, QHP, QHN, TMP)
    k(f'''
    s_cmp_lg_u32 s33, 0
    s_cbranch_scc1 {name}_nopoll
    s_lshl_b32 s48, s35, 7
    v_and_b32 v9, 7, v1
    v_lshlrev_b32 v9, 2, v9
    v_add_u32 v9, s48, v9
    s_mov_b32 s50, 0
    {name}_poll:
    buffer_load_dword v10, v9, s[24:27], 0 offen sc1
    s_add_u32 s50, s50, 1
    s_cmp_gt_u32 s50, {SPIN_MAX}
    s_cbranch_scc1 {name}_nopoll
    s_waitcnt vmcnt(0)
    v_cmp_ne_u32 vcc, 1, v10
    s_cbranch_vccnz {name}_poll
    {name}_nopoll:
    s_waitcnt vmcnt(0)
    s_barrier
    s_mul_i32 s47, s35, {8*PART_STRIDE}
    v_add_u32 v8, s47, v7
    ''')
    for w in range(8):
        k(f's_mov_b32 s51, {w*PART_STRIDE}')
        k(f'buffer_load_dwordx4 v[{164+4*w}:{167+4*w}], v8, s[20:23], s51 offen sc1')
    k(f'''
    s_cmp_lg_u32 s33, 0
    s_cbranch_scc1 {name}_noz2
    v_and_b32 v9, 15, v1
    v_lshlrev_b32 v9, 4, v9
    v_add_u32 v10, s47, v9
    v_add_u32 v10, 8192, v10
    ''')
    for w in range(8):
        k(f's_mov_b32 s51, {w*PART_STRIDE}')
        k(f'buffer_load_dwordx4 v[{196+4*w}:{199+4*w}], v10, s[20:23], s51 offen sc1')
    k('s_waitcnt vmcnt(0)')
    sum8(196)
    k(f'''
    v_cvt_pk_bf16_f32 v196, v196, v197
    v_cvt_pk_bf16_f32 v197, v198, v199
    v_and_b32 v9, 15, v1
    v_lshrrev_b32 v10, 2, v9
    v_lshlrev_b32 v10, 5, v10
    v_and_b32 v11, 1, v9
    v_lshl_add_u32 v10, v11, 4, v10
    v_bfe_u32 v11, v9, 1, 1
    v_lshl_add_u32 v10, v11, 3, v10
    v_add_u32 v10, {ZA}, v10
    s_mov_b32 exec_lo, 0xffff
    s_mov_b32 exec_hi, 0
    ds_write_b64 v10, v[196:197]
    s_mov_b64 exec, -1
    {name}_noz2:
    s_waitcnt vmcnt(0)
    ''')
    sum8(164)
    k(f'''
    v_cvt_pk_bf16_f32 v164, v164, v165
    v_cvt_pk_bf16_f32 v165, v166, v167
    s_lshr_b32 s46, s33, 1
    s_lshl_b32 s46, s46, 10
    s_and_b32 s47, s33, 1
    s_lshl_b32 s47, s47, 3
    s_add_u32 s46, s46, s47
    s_add_u32 s46, s46, {KVA}
    v_add_u32 v9, s46, v3
    ds_write_b64 v9, v[164:165]
    s_waitcnt lgkmcnt(0)
    s_barrier
    v_lshlrev_b32 v10, 4, v6
    v_add_u32 v10, {ZA}, v10
    v_add_u32 v11, {KVA}, v3
    ''')
    KA_, ZA_, NUM, DEN = 132, 148, 164, 180
    for i in range(4):
        k(f'ds_read_b128 v[{KA_+4*i}:{KA_+4*i+3}], v11 offset:{i*1024}')
        k(f'ds_read_b128 v[{ZA_+4*i}:{ZA_+4*i+3}], v10 offset:{i*32}')
    k('s_waitcnt lgkmcnt(0)')
    PHQ = [QHP, QHP+4, QHN, QHN+4]
    for i in range(4):
        mfma(k, NUM, KA_+4*i, PHQ[i], 0 if i==0 else None)
        mfma(k, DEN, ZA_+4*i, PHQ[i], 0 if i==0 else None)
    k(f'v_add_f32 v9, 0x358637bd, v{DEN}')
    k('v_rcp_f32 v9, v9')
    for i in range(16): k(f'v_mul_f32 v{NUM+i}, v{NUM+i}, v9')
    OP = 56
    for p in range(8): k(f'v_cvt_pk_bf16_f32 v{OP+p}, v{NUM+2*p}, v{NUM+2*p+1}')
    for g in (0,2):
        k(f'v_permlane32_swap_b32 v{OP+2*g}, v{OP+2*g+2}')
        k(f'v_permlane32_swap_b32 v{OP+2*g+1}, v{OP+2*g+3}')
    k(f'''
    s_lshl_b32 s46, s35, 17
    v_add_u32 v9, s46, v2
    s_mov_b32 s47, 65536
    ''')
    k(f'buffer_store_dwordx4 v[{OP}:{OP+3}], v9, s[16:19], 0 offen')
    k(f'buffer_store_dwordx4 v[{OP+4}:{OP+7}], v9, s[16:19], s47 offen')
    footer(k, name)
    return k.finish(), descriptor(name, 240)
```

```python
from common import *
from track import Q
from ka import mfma
LDS_KB = 131072
def gen_kb(name, xin, xout):
    k = Kern()
    header(k, name, 256)
    k(f'''
    s_load_dwordx2 s[4:5], s[0:1], {ARG['ws']}
    s_load_dwordx2 s[6:7], s[0:1], {ARG['out']}
    v_and_b32 v1, 63, v0
    v_lshrrev_b32 v2, 6, v0
    s_and_b32 s36, s2, 7
    s_lshr_b32 s37, s2, 3
    v_readfirstlane_b32 s33, v2
    s_and_b32 s34, s36, 3
    s_lshl_b32 s34, s34, 2
    s_and_b32 s38, s37, 3
    s_add_u32 s34, s34, s38
    s_lshr_b32 s35, s36, 2
    s_lshl_b32 s35, s35, 3
    s_lshr_b32 s38, s37, 2
    s_add_u32 s35, s35, s38
    s_and_b32 s39, s33, 3
    s_lshr_b32 s40, s33, 2
    s_mov_b32 s30, 0xffff0000
    s_waitcnt lgkmcnt(0)
    ''')
    srd(k, 8, 4, 5, 4*MB, WS_O)
    srd(k, 12, 4, 5, 2*MB, WS_WO)
    srd(k, 16, 4, 5, 4*MB, xin)
    if xout is None: srd(k, 20, 6, 7, 4*MB)
    else: srd(k, 20, 4, 5, 4*MB, xout)
    vm = Q(k,'vmcnt',63); lg = Q(k,'lgkmcnt',15)
    k(f'''
    v_and_b32 v5, 31, v1
    v_lshrrev_b32 v6, 5, v1
    s_lshl_b32 s41, s34, 7
    s_lshl_b32 s42, s39, 5
    s_add_u32 s41, s41, s42
    v_add_u32 v7, s41, v5
    v_lshl_add_u32 v8, v6, 11, v7
    v_lshlrev_b32 v8, 4, v8
    s_lshl_b32 s42, s40, 21
    v_add_u32 v2, s42, v8
    v_lshlrev_b32 v3, 4, v1
    s_lshl_b32 s43, s40, 16
    s_lshl_b32 s44, s40, 10
    s_add_u32 s45, s43, s44
    v_add_u32 v9, s45, v3
    s_sub_u32 s45, s43, s44
    s_add_u32 s45, s45, 1024
    v_add_u32 v10, s45, v3
    s_lshl_b32 s46, s39, 12
    s_add_u32 s46, s46, s43
    s_lshl_b32 s47, s35, 17
    s_add_u32 s47, s47, s46
    v_add_u32 v4, s47, v3
    ''')
    def dma(s):
        k(f's_add_u32 m0, s46, {s*16384}')
        k(f's_mov_b32 s48, {s*16384}')
        for t in range(4):
            k(f'buffer_load_dwordx4 v4, s[12:15], s48 offen offset:{t*1024} lds')
            vm.issue(('dma',s))
    XB = lambda s: 48+4*(s%16)
    def xload(step):
        k(f's_mov_b32 s49, {step*65536}')
        k(f'buffer_load_dwordx4 v[{XB(step)}:{XB(step)+3}], v2, s[8:11], s49 offen')
        vm.issue(('x',step))
    dma(0)
    for s in range(8): xload(s)
    dma(1)
    for s in range(8,16): xload(s)
    dma(2); dma(3)
    k(f'''
    s_lshl_b32 s50, s35, 3
    s_lshl_b32 s51, s40, 2
    s_add_u32 s50, s50, s51
    s_lshl_b32 s50, s50, 15
    v_add_u32 v11, s50, v8
    s_mov_b32 s52, 65536
    buffer_load_dwordx4 v[112:115], v11, s[16:19], 0 offen
    buffer_load_dwordx4 v[116:119], v11, s[16:19], s52 offen
    ''')
    vm.issue('res'); vm.issue('res')
    ACA, ACB = 16, 32
    for i in range(32): k(f'v_mov_b32 v{16+i}, 0')
    WB = lambda st,t: 120+8*st+4*t
    def wread(step):
        st = step&1
        k(f'ds_read_b128 v[{WB(st,0)}:{WB(st,0)+3}], v9 offset:{step*2048}'); lg.issue(('w',step))
        k(f'ds_read_b128 v[{WB(st,1)}:{WB(st,1)+3}], v10 offset:{step*2048}'); lg.issue(('w',step))
    vm.wait(('dma',0))
    k('s_barrier')
    wread(0)
    for step in range(32):
        if step%8==6 and step+2 < 32:
            vm.wait(('dma',step//8+1))
            k('s_barrier')
        if step+1 < 32: wread(step+1)
        lg.wait(('w',step))
        vm.wait(('x',step))
        st = step&1; X = XB(step)
        mfma(k, ACA, WB(st,0), X)
        mfma(k, ACB, WB(st,1), X)
        if step+16 < 32: xload(step+16)
    vm.drain()
    k('s_barrier')
    k('s_lshl_b32 s53, s33, 12')
    k('v_add_u32 v12, s53, v3')
    for g in range(4): k(f'ds_write_b128 v12, v[{ACB+4*g}:{ACB+4*g+3}] offset:{g*1024}')
    k(f'''
    s_xor_b32 s53, s33, 4
    s_lshl_b32 s53, s53, 12
    v_add_u32 v12, s53, v3
    s_waitcnt lgkmcnt(0)
    s_barrier
    ''')
    for g in range(4): k(f'ds_read_b128 v[{ACB+4*g}:{ACB+4*g+3}], v12 offset:{g*1024}')
    k('s_waitcnt lgkmcnt(0)')
    for i in range(16): k(f'v_add_f32 v{ACA+i}, v{ACA+i}, v{ACB+i}')
    OP = 48
    for p in range(8): k(f'v_cvt_pk_bf16_f32 v{OP+p}, v{ACA+2*p}, v{ACA+2*p+1}')
    for g in (0,2):
        k(f'v_permlane32_swap_b32 v{OP+2*g}, v{OP+2*g+2}')
        k(f'v_permlane32_swap_b32 v{OP+2*g+1}, v{OP+2*g+3}')
    for i in range(8):
        k(f'v_lshlrev_b32 v{56+2*i}, 16, v{OP+i}')
        k(f'v_and_b32 v{57+2*i}, s30, v{OP+i}')
        k(f'v_lshlrev_b32 v{72+2*i}, 16, v{112+i}')
        k(f'v_and_b32 v{73+2*i}, s30, v{112+i}')
    for i in range(16): k(f'v_add_f32 v{56+i}, v{56+i}, v{72+i}')
    for i in range(8): k(f'v_cvt_pk_bf16_f32 v{OP+i}, v{56+2*i}, v{57+2*i}')
    if xout is not None:
        k(f'buffer_store_dwordx4 v[{OP}:{OP+3}], v11, s[20:23], 0 offen')
        k(f'buffer_store_dwordx4 v[{OP+4}:{OP+7}], v11, s[20:23], s52 offen')
    else:
        k(f'''
        s_lshl_b32 s50, s35, 7
        s_lshl_b32 s51, s40, 6
        s_add_u32 s50, s50, s51
        v_lshlrev_b32 v12, 11, v7
        v_lshl_add_u32 v12, v6, 4, v12
        v_add_u32 v12, s50, v12
        buffer_store_dwordx4 v[{OP}:{OP+3}], v12, s[20:23], 0 offen
        buffer_store_dwordx4 v[{OP+4}:{OP+7}], v12, s[20:23], 0 offen offset:32
        ''')
    footer(k, name)
    return k.finish(), descriptor(name, 136)
```

```python
from common import *
def gen_e(name, first, xin, xout):
    k = Kern()
    header(k, name, 256)
    k(f'''
    s_load_dwordx2 s[4:5], s[0:1], {ARG['q']}
    s_load_dwordx2 s[24:25], s[0:1], {ARG['ws']}
    v_and_b32 v1, 7, v0
    v_lshrrev_b32 v2, 3, v0
    s_lshl_b32 s28, s2, 3
    v_add_u32 v3, s28, v1
    v_lshrrev_b32 v4, 6, v0
    s_mov_b32 s30, 0xffff0000
    s_waitcnt lgkmcnt(0)
    ''')
    if first: srd(k, 8, 4, 5, 4*MB)
    else: srd(k, 8, 24, 25, 4*MB, xin)
    srd(k, 12, 24, 25, 4*MB, WS_Y)
    srd(k, 16, 24, 25, 4*MB, xout)
    srd(k, 20, 24, 25, 4*MB, WS_XN)
    k('''
    v_lshlrev_b32 v5, 11, v2
    v_add_u32 v5, v5, v3
    v_lshlrev_b32 v5, 4, v5
    s_mov_b32 s31, 0x200000
    ''')
    if first:
        k('''
        v_lshlrev_b32 v6, 11, v3
        v_lshl_add_u32 v6, v2, 4, v6
        buffer_load_dwordx4 v[8:11], v6, s[8:11], 0 offen
        buffer_load_dwordx4 v[12:15], v6, s[8:11], 0 offen offset:1024
        ''')
    else:
        k('''
        buffer_load_dwordx4 v[8:11], v5, s[8:11], 0 offen
        buffer_load_dwordx4 v[12:15], v5, s[8:11], s31 offen
        ''')
    k('''
    v_lshlrev_b32 v7, 15, v2
    v_lshl_add_u32 v7, v3, 3, v7
    s_mov_b32 s32, 16384
    s_mov_b32 s33, 0x200000
    s_mov_b32 s34, 0x204000
    buffer_load_dwordx2 v[16:17], v7, s[12:15], 0 offen
    buffer_load_dwordx2 v[18:19], v7, s[12:15], s32 offen
    buffer_load_dwordx2 v[20:21], v7, s[12:15], s33 offen
    buffer_load_dwordx2 v[22:23], v7, s[12:15], s34 offen
    ''')
    k('''
    v_lshlrev_b32 v96, 6, v1
    v_lshl_add_u32 v97, v4, 3, v96
    ''')
    X = lambda i: 24+i
    T = lambda i: 40+i
    P = lambda i: 56+i
    Yf = lambda i: 64+i
    def unpack(dst, src, n=8):
        for i in range(n):
            k(f'v_lshlrev_b32 v{dst(2*i)}, 16, v{src(i)}')
            k(f'v_and_b32 v{dst(2*i+1)}, s30, v{src(i)}')
    def pack(dst, src, n=8):
        for i in range(n):
            k(f'v_cvt_pk_bf16_f32 v{dst(i)}, v{src(2*i)}, v{src(2*i+1)}')
    def stats(ldsoff):
        k(f'v_add_f32 v98, v{X(0)}, v{X(1)}')
        k(f'v_add_f32 v102, v{X(2)}, v{X(3)}')
        k(f'v_mul_f32 v99, v{X(0)}, v{X(0)}')
        k(f'v_mul_f32 v103, v{X(1)}, v{X(1)}')
        k(f'v_fmac_f32 v99, v{X(2)}, v{X(2)}')
        k(f'v_fmac_f32 v103, v{X(3)}, v{X(3)}')
        for i in range(4,16,2):
            k(f'v_add_f32 v98, v98, v{X(i)}')
            k(f'v_add_f32 v102, v102, v{X(i+1)}')
            k(f'v_fmac_f32 v99, v{X(i)}, v{X(i)}')
            k(f'v_fmac_f32 v103, v{X(i+1)}, v{X(i+1)}')
        k('''
        v_add_f32 v98, v98, v102
        v_add_f32 v99, v99, v103
        s_nop 1
        v_add_f32_dpp v98, v98, v98 row_ror:8 row_mask:0xf bank_mask:0xf
        v_add_f32_dpp v99, v99, v99 row_ror:8 row_mask:0xf bank_mask:0xf
        v_mov_b32 v102, v98
        v_mov_b32 v103, v99
        s_nop 0
        v_permlane16_swap_b32 v98, v102
        v_permlane16_swap_b32 v99, v103
        v_add_f32 v98, v98, v102
        v_add_f32 v99, v99, v103
        v_mov_b32 v102, v98
        v_mov_b32 v103, v99
        s_nop 0
        v_permlane32_swap_b32 v98, v102
        v_permlane32_swap_b32 v99, v103
        v_add_f32 v98, v98, v102
        v_add_f32 v99, v99, v103
        ''')
        k(f'ds_write_b64 v97, v[98:99] offset:{ldsoff}')
        k('s_waitcnt lgkmcnt(0)')
        k('s_barrier')
        for i in range(4):
            k(f'ds_read_b128 v[{104+4*i}:{107+4*i}], v96 offset:{ldsoff+16*i}')
        k('s_waitcnt lgkmcnt(0)')
        k('''
        v_add_f32 v104, v104, v106
        v_add_f32 v105, v105, v107
        v_add_f32 v108, v108, v110
        v_add_f32 v109, v109, v111
        v_add_f32 v112, v112, v114
        v_add_f32 v113, v113, v115
        v_add_f32 v116, v116, v118
        v_add_f32 v117, v117, v119
        v_add_f32 v104, v104, v108
        v_add_f32 v105, v105, v109
        v_add_f32 v112, v112, v116
        v_add_f32 v113, v113, v117
        v_add_f32 v104, v104, v112
        v_add_f32 v105, v105, v113
        v_mul_f32 v104, 0x3a800000, v104
        v_mul_f32 v105, 0x3a800000, v105
        v_fma_f32 v105, -v104, v104, v105
        v_max_f32 v105, 0, v105
        v_cvt_pk_bf16_f32 v106, v104, v105
        v_lshlrev_b32 v100, 16, v106
        v_and_b32 v105, s30, v106
        v_add_f32 v105, 0x3727c5ac, v105
        v_cvt_pk_bf16_f32 v106, v105, v105
        v_and_b32 v105, s30, v106
        v_sqrt_f32 v105, v105
        v_cvt_pk_bf16_f32 v106, v105, v105
        v_and_b32 v105, s30, v106
        v_rcp_f32 v101, v105
        ''')
    def normalize():
        for i in range(16): k(f'v_sub_f32 v{T(i)}, v{X(i)}, v100')
        pack(P, T); unpack(T, P)
        for i in range(16): k(f'v_mul_f32 v{T(i)}, v{T(i)}, v101')
        pack(P, T)
    k('s_waitcnt vmcnt(4)')
    unpack(X, lambda i: 8+i)
    stats(0)
    normalize()
    unpack(T, P)
    k('s_waitcnt vmcnt(0)')
    unpack(Yf, lambda i: 16+i)
    for i in range(16): k(f'v_mul_f32 v{T(i)}, v{T(i)}, v{Yf(i)}')
    pack(P, T); unpack(T, P)
    for i in range(16): k(f'v_add_f32 v{X(i)}, v{X(i)}, v{T(i)}')
    XP = lambda i: 80+i
    pack(XP, X); unpack(X, XP)
    k('buffer_store_dwordx4 v[80:83], v5, s[16:19], 0 offen')
    k('buffer_store_dwordx4 v[84:87], v5, s[16:19], s31 offen')
    stats(512)
    normalize()
    k('buffer_store_dwordx4 v[56:59], v5, s[20:23], 0 offen')
    k('buffer_store_dwordx4 v[60:63], v5, s[20:23], s31 offen')
    footer(k, name)
    return k.finish(), descriptor(name, 128)
LDS_E = 1024
```

```python
class Q:
    def __init__(self, k, name, maxn):
        self.k=k; self.name=name; self.q=[]; self.maxn=maxn
    def issue(self, tag):
        self.q.append(tag)
    def wait(self, tag):
        idx=[i for i,t in enumerate(self.q) if t==tag]
        if not idx: return
        n=len(self.q)-1-idx[-1]
        n=min(n,self.maxn)
        self.k(f's_waitcnt {self.name}({n})')
        self.q=self.q[len(self.q)-n:] if n>0 else []
    def wait_n(self, n):
        self.k(f's_waitcnt {self.name}({n})')
        self.q=self.q[len(self.q)-n:] if n>0 else []
    def drain(self):
        self.k(f's_waitcnt {self.name}(0)'); self.q=[]
```

```python
import sys
sys.path.insert(0,'gen')
from common import *
import build, k0, k1, ke, ka
try:
    import kb
except ImportError:
    kb=None
def full():
    return [('k0_kernel',k0.gen_k0,0),('k1_kernel',k1.gen_k1,k1.LDS_K1),
        ('e1_kernel',lambda n: ke.gen_e(n,True,None,WS_X1),ke.LDS_E),
        ('ka1_kernel',lambda n: ka.gen_ka(n,0),ka.LDS_KA),
        ('kb1_kernel',lambda n: kb.gen_kb(n,WS_X1,WS_X2),kb.LDS_KB) if kb else None,
        ('e2_kernel',lambda n: ke.gen_e(n,False,WS_X2,WS_X3),ke.LDS_E),
        ('ka2_kernel',lambda n: ka.gen_ka(n,1),ka.LDS_KA),
        ('kb2_kernel',lambda n: kb.gen_kb(n,WS_X3,None),kb.LDS_KB) if kb else None]
if __name__=='__main__':
    n = int(sys.argv[2]) if len(sys.argv)>2 else 8
    build.build(full()[:n], sys.argv[1])
```

```python
from asmlib import Kern
MB = 1<<20
ARG = dict(q=0,k=8,v=16,shift=24,ssmk=32,ssmd=40,x=48,wqkv=56,wphi=64,wo=72,out=80,dbg=88,ws=96)
UTS=4096+128
CS4=16384+128
CS8=32768+128
SZ_UT=1024*UTS; SZ_Y=256*CS4; SZ_X=128*CS8
WS_UT=0; WS_Y=5*MB; WS_WQ=10*MB; WS_WO=16*MB; WS_X1=18*MB; WS_X2=23*MB; WS_X3=28*MB; WS_XN=33*MB; WS_O=38*MB
WS_PART=43*MB; PART_STRIDE=8448; PART_LAYER=32*8*PART_STRIDE
WS_FLAG=48*MB; FLAG_BYTES=2*32*128
NAME='interleave_layers__ssm_conv_h3__linear_kernel_hedgehog__prompt'

def srd(k, s, lo, hi, size, off=0):
    if off:
        k(f's_add_u32 s{s}, s{lo}, {off}')
        k(f's_addc_u32 s{s+1}, s{hi}, 0')
    else:
        k(f's_mov_b32 s{s}, s{lo}')
        k(f's_mov_b32 s{s+1}, s{hi}')
    k(f's_mov_b32 s{s+2}, {size}')
    k(f's_mov_b32 s{s+3}, 0x20000')

def header(k, name, nwg):
    k(f'.globl {name}')
    k('.p2align 8')
    k(f'.type {name},@function')
    k(f'{name}:')
    k(f's_cmp_ge_u32 s2, {nwg}')
    k(f's_cbranch_scc1 {name}_end')

def footer(k, name):
    k(f'{name}_end:')
    k('s_endpgm')

def descriptor(name, vgpr, sgpr=100):
    acc = (vgpr+3)//4*4
    return f'''.amdhsa_kernel {name}
  .amdhsa_next_free_vgpr {vgpr}
  .amdhsa_next_free_sgpr {sgpr}
  .amdhsa_accum_offset {acc}
  .amdhsa_group_segment_fixed_size 0
  .amdhsa_kernarg_size 104
  .amdhsa_user_sgpr_count 2
  .amdhsa_user_sgpr_kernarg_segment_ptr 1
  .amdhsa_system_sgpr_workgroup_id_x 1
.end_amdhsa_kernel'''

STAMPS = False
WS_TS = 52*MB
class Stamper:
    def __init__(self, k, kid):
        self.k=k; self.kid=kid; self.n=0; self.names=[]
    def __call__(self, nm):
        if not STAMPS: return
        i=self.n; self.n+=1; self.names.append(nm)
        assert i<10
        self.k('s_memtime s[98:99]')
        self.k('s_memrealtime s[96:97]')
        self.k('s_waitcnt lgkmcnt(0)')
        self.k(f's_mov_b32 s{76+i}, s98')
        self.k(f's_mov_b32 s{86+i}, s96')
    def flush(self):
        if not STAMPS: return
        self('end')
        k=self.k
        k('s_load_dwordx2 s[98:99], s[0:1], 96')
        k('s_waitcnt lgkmcnt(0)')
        k(f's_add_u32 s68, s98, {WS_TS + self.kid*524288}')
        k('s_addc_u32 s69, s99, 0')
        k('s_mov_b32 s70, 524288')
        k('s_mov_b32 s71, 0x20000')
        k('v_lshrrev_b32 v1, 6, v0')
        k('s_lshl_b32 s72, s2, 3')
        k('v_add_u32 v1, s72, v1')
        k('v_lshlrev_b32 v1, 7, v1')
        k('v_and_b32 v2, 63, v0')
        k('v_cmp_eq_u32 vcc, 0, v2')
        k('s_and_saveexec_b64 s[72:73], vcc')
        for i in range(self.n):
            k(f'v_mov_b32 v2, s{76+i}')
            k(f'buffer_store_dword v2, v1, s[68:71], 0 offen offset:{4*i}')
            k(f'v_mov_b32 v2, s{86+i}')
            k(f'buffer_store_dword v2, v1, s[68:71], 0 offen offset:{64+4*i}')
        k('s_waitcnt vmcnt(0)')
```

```python
from common import *
from track import Q
SLAB=24576
LDS_KA=3*SLAB
RED_Z=65536
KVA=67584
ZA=71680
SPIN_MAX=200000

def softmax_pair(k, src, EP, EN, outP, outN, tmp):
    mx,mn,t0,t1,sp,sn,t2,t3 = [tmp+i for i in range(8)]
    k(f'v_max3_f32 v{mx}, v{src}, v{src+1}, v{src+2}')
    k(f'v_min3_f32 v{mn}, v{src}, v{src+1}, v{src+2}')
    for i in range(3,15,2):
        k(f'v_max3_f32 v{mx}, v{mx}, v{src+i}, v{src+i+1}')
        k(f'v_min3_f32 v{mn}, v{mn}, v{src+i}, v{src+i+1}')
    k(f'v_max_f32 v{mx}, v{mx}, v{src+15}')
    k(f'v_min_f32 v{mn}, v{mn}, v{src+15}')
    k(f'v_mov_b32 v{t0}, v{mx}')
    k(f'v_mov_b32 v{t1}, v{mn}')
    k(f'v_permlane32_swap_b32 v{mx}, v{t0}')
    k(f'v_permlane32_swap_b32 v{mn}, v{t1}')
    k(f'v_max_f32 v{mx}, v{mx}, v{t0}')
    k(f'v_min_f32 v{mn}, v{mn}, v{t1}')
    k(f'v_mul_f32 v{mx}, s41, v{mx}')
    k(f'v_mul_f32 v{mn}, s40, v{mn}')
    for i in range(16):
        k(f'v_fma_f32 v{EP+i}, v{src+i}, s40, v{mx}')
        k(f'v_fma_f32 v{EN+i}, v{src+i}, s41, v{mn}')
    for i in range(16):
        k(f'v_exp_f32 v{EP+i}, v{EP+i}')
        k(f'v_exp_f32 v{EN+i}, v{EN+i}')
    k(f'v_add_f32 v{sp}, v{EP}, v{EP+1}')
    k(f'v_add_f32 v{sn}, v{EN}, v{EN+1}')
    k(f'v_add_f32 v{t2}, v{EP+2}, v{EP+3}')
    k(f'v_add_f32 v{t3}, v{EN+2}, v{EN+3}')
    for i in range(4,16,2):
        k(f'v_add_f32 v{sp}, v{sp}, v{EP+i}')
        k(f'v_add_f32 v{sn}, v{sn}, v{EN+i}')
        k(f'v_add_f32 v{t2}, v{t2}, v{EP+i+1}')
        k(f'v_add_f32 v{t3}, v{t3}, v{EN+i+1}')
    k(f'v_add_f32 v{sp}, v{sp}, v{t2}')
    k(f'v_add_f32 v{sn}, v{sn}, v{t3}')
    k(f'v_mov_b32 v{t0}, v{sp}')
    k(f'v_mov_b32 v{t1}, v{sn}')
    k(f'v_permlane32_swap_b32 v{sp}, v{t0}')
    k(f'v_permlane32_swap_b32 v{sn}, v{t1}')
    k(f'v_add_f32 v{sp}, v{sp}, v{t0}')
    k(f'v_add_f32 v{sn}, v{sn}, v{t1}')
    k(f'v_rcp_f32 v{sp}, v{sp}')
    k(f'v_rcp_f32 v{sn}, v{sn}')
    for i in range(16):
        k(f'v_mul_f32 v{EP+i}, v{EP+i}, v{sp}')
        k(f'v_mul_f32 v{EN+i}, v{EN+i}, v{sn}')
    for p in range(8):
        k(f'v_cvt_pk_bf16_f32 v{outP+p}, v{EP+2*p}, v{EP+2*p+1}')
        k(f'v_cvt_pk_bf16_f32 v{outN+p}, v{EN+2*p}, v{EN+2*p+1}')

def mfma(k, d, a, b, c=None):
    cs = f'v[{d}:{d+15}]' if c is None else (str(c) if c==0 else f'v[{c}:{c+15}]')
    k(f'v_mfma_f32_32x32x16_bf16 v[{d}:{d+15}], v[{a}:{a+3}], v[{b}:{b+3}], {cs}')

def gen_ka(name, layer):
    k = Kern()
    header(k, name, 256)
    ts = Stamper(k, 3 if layer==0 else 6); ts('start')
    k(f'''
    s_load_dwordx2 s[4:5], s[0:1], {ARG['ws']}
    s_load_dwordx2 s[6:7], s[0:1], {ARG['wphi']}
    v_and_b32 v1, 63, v0
    v_lshrrev_b32 v2, 6, v0
    s_and_b32 s36, s2, 7
    s_lshr_b32 s37, s2, 3
    v_readfirstlane_b32 s33, v2
    s_and_b32 s34, s36, 1
    s_lshl_b32 s34, s34, 2
    s_and_b32 s38, s37, 3
    s_add_u32 s34, s34, s38
    s_lshr_b32 s35, s36, 1
    s_lshl_b32 s35, s35, 3
    s_lshr_b32 s38, s37, 2
    s_add_u32 s35, s35, s38
    s_waitcnt lgkmcnt(0)
    ''')
    srd(k, 8, 4, 5, SZ_X, WS_XN)
    srd(k, 12, 4, 5, 6*MB, WS_WQ)
    srd(k, 16, 4, 5, SZ_X, WS_O)
    srd(k, 20, 4, 5, PART_LAYER, WS_PART + layer*PART_LAYER)
    srd(k, 24, 4, 5, 32*128, WS_FLAG + layer*32*128)
    srd(k, 28, 6, 7, 65536)
    vm = Q(k,'vmcnt',63); lg = Q(k,'lgkmcnt',15)
    k(f'''
    v_and_b32 v5, 31, v1
    v_lshrrev_b32 v6, 5, v1
    s_lshl_b32 s38, s34, 8
    s_lshl_b32 s39, s33, 5
    s_add_u32 s38, s38, s39
    v_add_u32 v2, s38, v5
    v_lshlrev_b32 v2, 4, v2
    v_mul_u32_u24 v7, {CS8}, v6
    v_add_u32 v2, v2, v7
    v_lshlrev_b32 v3, 4, v1
    s_mul_i32 s42, s35, 196608
    s_mul_i32 s43, s33, 3072
    s_add_u32 s42, s42, s43
    v_add_u32 v4, s42, v3
    v_add_u32 v228, {2*SLAB}, v3
    ''')
    def dma(slab):
        k(f's_add_u32 m0, s43, {(slab%3)*SLAB}')
        k(f's_mov_b32 s44, {slab*SLAB}')
        for t in range(3):
            k(f'buffer_load_dwordx4 v4, s[12:15], s44 offen offset:{t*1024} lds')
            vm.issue(('dma',slab))
    XB = lambda s: 56+4*(s%8)
    def xload(step):
        k(f's_mov_b32 s45, {step*2*CS8}')
        k(f'buffer_load_dwordx4 v[{XB(step)}:{XB(step)+3}], v2, s[8:11], s45 offen')
        vm.issue(('x',step))
    dma(0)
    for s in range(4): xload(s)
    dma(1)
    for s in range(4,8): xload(s)
    k(f'''
    s_lshl_b32 s46, s35, 11
    v_lshlrev_b32 v7, 8, v6
    v_lshl_add_u32 v7, v5, 1, v7
    v_add_u32 v7, s46, v7
    ''')
    for i in range(2):
        for j in range(8):
            d = 16*i + 8*(j>>2) + (j&3)
            k(f'buffer_load_ushort v{128+8*i+j}, v7, s[28:31], 0 offen offset:{d*64}')
            vm.issue('wphi')
    k('v_lshlrev_b32 v8, 2, v6')
    k('v_sub_u32 v8, v5, v8')
    for i in range(2):
        for p in range(4):
            c0 = 16*i + 8*(p>>1) + 2*(p&1)
            r = 120+4*i+p
            k(f'v_cmp_eq_u32 vcc, {c0}, v8')
            k(f'v_mov_b32 v9, 0x3f80')
            k(f'v_cndmask_b32 v{r}, 0, v9, vcc')
            k(f'v_cmp_eq_u32 vcc, {c0+1}, v8')
            k(f'v_mov_b32 v9, 0x3f800000')
            k(f'v_cndmask_b32 v10, 0, v9, vcc')
            k(f'v_or_b32 v{r}, v{r}, v10')
    ACQ, ACK, ACV = 8, 24, 40
    for i in range(48): k(f'v_mov_b32 v{8+i}, 0')
    k('s_mov_b32 s40, 0x3fb8aa3b')
    k('s_mov_b32 s41, 0xbfb8aa3b')
    WB = lambda st,t: 88+12*st+4*t
    def wread(step):
        slab, j = step//8, step%8
        st = step&1
        for t in range(3):
            if slab%3==2: k(f'ds_read_b128 v[{WB(st,t)}:{WB(st,t)+3}], v228 offset:{j*3072 + t*1024}')
            else: k(f'ds_read_b128 v[{WB(st,t)}:{WB(st,t)+3}], v3 offset:{(slab%3)*SLAB + j*3072 + t*1024}')
            lg.issue(('w',step))
    vm.wait(('dma',0))
    k('s_barrier')
    ts('first')
    wread(0)
    for step in range(64):
        slab, j = step//8, step%8
        if step+1 < 64: wread(step+1)
        lg.wait(('w',step))
        vm.wait(('x',step))
        st = step&1; X = XB(step)
        mfma(k, ACQ, WB(st,0), X)
        mfma(k, ACK, WB(st,1), X)
        mfma(k, ACV, X, WB(st,2))
        if step+8 < 64: xload(step+8)
        if j==3 and slab+1 < 8:
            vm.wait(('dma',slab+1))
            k('s_barrier')
            if slab+2 < 8: dma(slab+2)
    ts('main')
    vm.drain()
    for i in range(2):
        for p in range(4):
            k(f'v_lshl_or_b32 v{112+4*i+p}, v{128+8*i+2*p+1}, 16, v{128+8*i+2*p}')
    k('s_barrier')
    QP = 232
    for p in range(8): k(f'v_cvt_pk_bf16_f32 v{QP+p}, v{8+2*p}, v{8+2*p+1}')
    KP, VP, PK, EP, EN = 56, 64, 72, 132, 148
    for p in range(8): k(f'v_cvt_pk_bf16_f32 v{KP+p}, v{ACK+2*p}, v{ACK+2*p+1}')
    mfma(k, PK, 112, KP, 0)
    mfma(k, PK, 116, KP+4)
    for p in range(8): k(f'v_cvt_pk_bf16_f32 v{VP+p}, v{ACV+2*p}, v{ACV+2*p+1}')
    for i in range(4): k(f'v_mov_b32 v{128+i}, 0x3f803f80')
    PHP, PHN, TMP = 88, 96, 104
    softmax_pair(k, PK, EP, EN, PHP, PHN, TMP)
    KVP, KVN, ZP, ZN = 164, 180, 196, 212
    T1, T2, PT1, PT2 = 132, 148, 72, 80
    mfma(k, T1, PHP, 120, 0)
    mfma(k, T2, PHN, 120, 0)
    mfma(k, T1, PHP+4, 124)
    mfma(k, T2, PHN+4, 124)
    for p in range(8): k(f'v_cvt_pk_bf16_f32 v{PT1+p}, v{T1+2*p}, v{T1+2*p+1}')
    for p in range(8): k(f'v_cvt_pk_bf16_f32 v{PT2+p}, v{T2+2*p}, v{T2+2*p+1}')
    mfma(k, KVP, PT1, VP, 0)
    mfma(k, ZP, PT1, 128, 0)
    mfma(k, KVN, PT2, VP, 0)
    mfma(k, ZN, PT2, 128, 0)
    mfma(k, KVP, PT1+4, VP+4)
    mfma(k, ZP, PT1+4, 128)
    mfma(k, KVN, PT2+4, VP+4)
    mfma(k, ZN, PT2+4, 128)
    ts('kside')
    k('s_lshl_b32 s46, s33, 13')
    k('v_add_u32 v7, s46, v3')
    for fz,base in enumerate((KVP,KVN)):
        for g in range(4):
            k(f'ds_write_b128 v7, v[{base+4*g}:{base+4*g+3}] offset:{(fz*4+g)*1024}')
    k(f'''
    s_lshl_b32 s46, s33, 8
    s_add_u32 s46, s46, {RED_Z}
    v_lshlrev_b32 v7, 4, v6
    v_add_u32 v7, s46, v7
    s_mov_b32 exec_lo, 1
    s_mov_b32 exec_hi, 1
    ''')
    for fz,base in enumerate((ZP,ZN)):
        for g in range(4):
            k(f'ds_write_b128 v7, v[{base+4*g}:{base+4*g+3}] offset:{fz*128+g*32}')
    k('s_mov_b64 exec, -1')
    k('s_waitcnt lgkmcnt(0)')
    k('s_barrier')
    k('s_lshl_b32 s46, s33, 10')
    k('v_add_u32 v7, s46, v3')
    for w in range(8):
        k(f'ds_read_b128 v[{164+4*w}:{167+4*w}], v7 offset:{w*8192}')
    k(f'''
    s_lshl_b32 s47, s35, 3
    s_add_u32 s47, s47, s34
    s_mul_i32 s47, s47, {PART_STRIDE}
    v_add_u32 v8, s47, v7
    ''')
    def sum8(base):
        for i in range(4):
            k(f'v_add_f32 v{base+i}, v{base+i}, v{base+4+i}')
            k(f'v_add_f32 v{base+8+i}, v{base+8+i}, v{base+12+i}')
            k(f'v_add_f32 v{base+16+i}, v{base+16+i}, v{base+20+i}')
            k(f'v_add_f32 v{base+24+i}, v{base+24+i}, v{base+28+i}')
        for i in range(4):
            k(f'v_add_f32 v{base+i}, v{base+i}, v{base+8+i}')
            k(f'v_add_f32 v{base+16+i}, v{base+16+i}, v{base+24+i}')
        for i in range(4):
            k(f'v_add_f32 v{base+i}, v{base+i}, v{base+16+i}')
    k('s_waitcnt lgkmcnt(0)')
    sum8(164)
    k('buffer_store_dwordx4 v[164:167], v8, s[20:23], 0 offen sc1')
    k(f'''
    s_cmp_lg_u32 s33, 0
    s_cbranch_scc1 {name}_noz
    v_and_b32 v9, 15, v1
    v_lshlrev_b32 v9, 4, v9
    v_add_u32 v11, {RED_Z}, v9
    ''')
    for w in range(8):
        k(f'ds_read_b128 v[{196+4*w}:{199+4*w}], v11 offset:{w*256}')
    k('s_waitcnt lgkmcnt(0)')
    sum8(196)
    k(f'''
    v_add_u32 v9, s47, v9
    v_add_u32 v9, 8192, v9
    s_mov_b32 exec_lo, 0xffff
    s_mov_b32 exec_hi, 0
    buffer_store_dwordx4 v[196:199], v9, s[20:23], 0 offen sc1
    s_mov_b64 exec, -1
    {name}_noz:
    s_waitcnt vmcnt(0)
    s_barrier
    s_cmp_lg_u32 s33, 0
    s_cbranch_scc1 {name}_noflag
    s_lshl_b32 s48, s35, 7
    s_lshl_b32 s49, s34, 2
    s_add_u32 s48, s48, s49
    v_mov_b32 v9, s48
    v_mov_b32 v10, 1
    s_mov_b32 exec_lo, 1
    s_mov_b32 exec_hi, 0
    buffer_store_dword v10, v9, s[24:27], 0 offen sc1
    s_mov_b64 exec, -1
    {name}_noflag:
    ''')
    ts('published')
    mfma(k, PK, 112, QP, 0)
    mfma(k, PK, 116, QP+4)
    QHP, QHN = 88, 96
    softmax_pair(k, PK, EP, EN, QHP, QHN, TMP)
    ts('qside')
    k(f'''
    s_cmp_lg_u32 s33, 0
    s_cbranch_scc1 {name}_nopoll
    s_lshl_b32 s48, s35, 7
    v_and_b32 v9, 7, v1
    v_lshlrev_b32 v9, 2, v9
    v_add_u32 v9, s48, v9
    s_mov_b32 s50, 0
    {name}_poll:
    buffer_load_dword v10, v9, s[24:27], 0 offen sc1
    s_add_u32 s50, s50, 1
    s_cmp_gt_u32 s50, {SPIN_MAX}
    s_cbranch_scc1 {name}_nopoll
    s_waitcnt vmcnt(0)
    v_cmp_ne_u32 vcc, 1, v10
    s_cbranch_vccnz {name}_poll
    {name}_nopoll:
    s_waitcnt vmcnt(0)
    s_barrier
    s_mul_i32 s47, s35, {8*PART_STRIDE}
    v_add_u32 v8, s47, v7
    ''')
    ts('polled')
    for w in range(8):
        k(f's_mov_b32 s51, {w*PART_STRIDE}')
        k(f'buffer_load_dwordx4 v[{164+4*w}:{167+4*w}], v8, s[20:23], s51 offen sc1')
    k(f'''
    s_cmp_lg_u32 s33, 0
    s_cbranch_scc1 {name}_noz2
    v_and_b32 v9, 15, v1
    v_lshlrev_b32 v9, 4, v9
    v_add_u32 v10, s47, v9
    v_add_u32 v10, 8192, v10
    ''')
    for w in range(8):
        k(f's_mov_b32 s51, {w*PART_STRIDE}')
        k(f'buffer_load_dwordx4 v[{196+4*w}:{199+4*w}], v10, s[20:23], s51 offen sc1')
    k('s_waitcnt vmcnt(0)')
    sum8(196)
    k(f'''
    v_cvt_pk_bf16_f32 v196, v196, v197
    v_cvt_pk_bf16_f32 v197, v198, v199
    v_and_b32 v9, 15, v1
    v_lshrrev_b32 v10, 2, v9
    v_lshlrev_b32 v10, 5, v10
    v_and_b32 v11, 1, v9
    v_lshl_add_u32 v10, v11, 4, v10
    v_bfe_u32 v11, v9, 1, 1
    v_lshl_add_u32 v10, v11, 3, v10
    v_add_u32 v10, {ZA}, v10
    s_mov_b32 exec_lo, 0xffff
    s_mov_b32 exec_hi, 0
    ds_write_b64 v10, v[196:197]
    s_mov_b64 exec, -1
    {name}_noz2:
    s_waitcnt vmcnt(0)
    ''')
    sum8(164)
    k(f'''
    v_cvt_pk_bf16_f32 v164, v164, v165
    v_cvt_pk_bf16_f32 v165, v166, v167
    s_lshr_b32 s46, s33, 1
    s_lshl_b32 s46, s46, 10
    s_and_b32 s47, s33, 1
    s_lshl_b32 s47, s47, 3
    s_add_u32 s46, s46, s47
    s_add_u32 s46, s46, {KVA}
    v_add_u32 v9, s46, v3
    ds_write_b64 v9, v[164:165]
    s_waitcnt lgkmcnt(0)
    s_barrier
    v_lshlrev_b32 v10, 4, v6
    v_add_u32 v10, {ZA}, v10
    v_add_u32 v11, {KVA}, v3
    ''')
    ts('reduced')
    KA_, ZA_, NUM, DEN = 132, 148, 164, 180
    for i in range(4):
        k(f'ds_read_b128 v[{KA_+4*i}:{KA_+4*i+3}], v11 offset:{i*1024}')
        k(f'ds_read_b128 v[{ZA_+4*i}:{ZA_+4*i+3}], v10 offset:{i*32}')
    k('s_waitcnt lgkmcnt(0)')
    PHQ = [QHP, QHP+4, QHN, QHN+4]
    for i in range(4):
        mfma(k, NUM, KA_+4*i, PHQ[i], 0 if i==0 else None)
        mfma(k, DEN, ZA_+4*i, PHQ[i], 0 if i==0 else None)
    k(f'v_add_f32 v9, 0x358637bd, v{DEN}')
    k('v_rcp_f32 v9, v9')
    for i in range(16): k(f'v_mul_f32 v{NUM+i}, v{NUM+i}, v9')
    OP = 56
    for p in range(8): k(f'v_cvt_pk_bf16_f32 v{OP+p}, v{NUM+2*p}, v{NUM+2*p+1}')
    for g in (0,2):
        k(f'v_permlane32_swap_b32 v{OP+2*g}, v{OP+2*g+2}')
        k(f'v_permlane32_swap_b32 v{OP+2*g+1}, v{OP+2*g+3}')
    k(f'''
    s_mul_i32 s46, s35, {4*CS8}
    v_add_u32 v9, s46, v2
    s_mov_b32 s47, {2*CS8}
    ''')
    k(f'buffer_store_dwordx4 v[{OP}:{OP+3}], v9, s[16:19], 0 offen')
    k(f'buffer_store_dwordx4 v[{OP+4}:{OP+7}], v9, s[16:19], s47 offen')
    ts.flush()
    footer(k, name)
    return k.finish(), descriptor(name, 240)
```

```python
from asmlib import Kern
from track import Q
MB = 1<<20
ARG = dict(q=0,k=8,v=16,shift=24,ssmk=32,ssmd=40,x=48,wqkv=56,wphi=64,wo=72,out=80,dbg=88,ws=96)
UTS=4096+128; CS4=16384+128; CS8=32768+128
SZ_UT=1024*UTS; SZ_Y=256*CS4; SZ_X=128*CS8
WS_UT=0; WS_Y=5*MB; WS_WQ=10*MB; WS_WO=16*MB; WS_X1=18*MB; WS_X2=23*MB; WS_X3=28*MB
WS_XN=[33*MB,38*MB]; WS_O=[43*MB,48*MB]
WS_PART=53*MB; PART_STRIDE=8448; PART_LAYER=32*8*PART_STRIDE
WS_FLAG=58*MB; WS_TS=60*MB; WS_SIZE=64*MB
F_P0,F_CONV,F_E0,F_E1,F_KA0,F_KA1,F_KB0 = range(7)
F_KV=8192
NAME='interleave_layers__ssm_conv_h3__linear_kernel_hedgehog__prompt'
SPIN_MAX=100000
LDS_TOTAL=163840
S_WS=8
S_A=12; S_B=16; S_C=20; S_D=28
S_DBG=24
S_WAVE=33; S_G=34; S_J=35; S_PURE=36; S_MASK=39; S_L2E=40; S_NL2E=41
STAMPS=False

def srd(k, s, lo, hi, size, off=0):
    if off:
        k(f's_add_u32 s{s}, s{lo}, {off}')
        k(f's_addc_u32 s{s+1}, s{hi}, 0')
    else:
        k(f's_mov_b32 s{s}, s{lo}')
        k(f's_mov_b32 s{s+1}, s{hi}')
    k(f's_mov_b32 s{s+2}, {size}')
    k(f's_mov_b32 s{s+3}, 0x20000')

def load_srd(k, s, arg, size):
    k(f's_load_dwordx2 s[{s}:{s+1}], s[0:1], {ARG[arg]}')
    k(f's_mov_b32 s{s+2}, {size}')
    k(f's_mov_b32 s{s+3}, 0x20000')

_uid=[0]
def uid(p):
    _uid[0]+=1
    return f'L{p}{_uid[0]}'

def lstores(k, lines):
    a,b=uid('st'),uid('sd')
    k(f's_cmp_eq_u32 s{S_PURE}, 0')
    k(f's_cbranch_scc1 {a}')
    for l in lines: k(l)
    k(f's_branch {b}')
    k(f'{a}:')
    for l in lines:
        if l.startswith('buffer_store'): k(l+' sc1')
        else: k(l)
    k(f'{b}:')

def publish(k, arr, local, vt=230):
    skip=uid('pb')
    k('s_waitcnt vmcnt(0)')
    k('s_barrier')
    k(f's_cmp_lg_u32 s{S_WAVE}, 0')
    k(f's_cbranch_scc1 {skip}')
    if arr>=F_KV:
        k(f's_lshl_b32 s42, s{S_J}, 7')
        k(f's_lshl_b32 s43, s{S_G}, 2')
        off=WS_FLAG+arr
    else:
        k(f's_lshl_b32 s42, s{S_G}, 7')
        k(f's_lshl_b32 s43, s{S_J}, 2')
        off=WS_FLAG+arr*1024
    k('s_add_u32 s42, s42, s43')
    k(f's_add_u32 s42, s42, {off}')
    k(f'v_mov_b32 v{vt}, s42')
    k(f'v_mov_b32 v{vt+1}, 1')
    k('s_mov_b64 exec, 1')
    if local: lstores(k, [f'buffer_store_dword v{vt+1}, v{vt}, s[{S_WS}:{S_WS+3}], 0 offen'])
    else: k(f'buffer_store_dword v{vt+1}, v{vt}, s[{S_WS}:{S_WS+3}], 0 offen sc1')
    k('s_mov_b64 exec, -1')
    k(f'{skip}:')

def wait_flags(k, arr, kind, vt=230):
    skip,poll=uid('wf'),uid('pl')
    k(f's_cmp_lg_u32 s{S_WAVE}, 0')
    k(f's_cbranch_scc1 {skip}')
    k(f'v_and_b32 v{vt}, 63, v0')
    if kind=='group':
        k(f'v_and_b32 v{vt}, 31, v{vt}')
        k(f'v_lshlrev_b32 v{vt}, 2, v{vt}')
        k(f's_lshl_b32 s42, s{S_G}, 7')
        k(f's_add_u32 s42, s42, {WS_FLAG+arr*1024}')
    elif kind=='all':
        k(f'v_lshlrev_b32 v{vt}, 4, v{vt}')
        k(f's_mov_b32 s42, {WS_FLAG+arr*1024}')
    else:
        k(f'v_and_b32 v{vt}, 7, v{vt}')
        k(f'v_lshlrev_b32 v{vt}, 2, v{vt}')
        k(f's_lshl_b32 s42, s{S_J}, 7')
        k(f's_add_u32 s42, s42, {WS_FLAG+arr}')
    k(f'v_add_u32 v{vt}, s42, v{vt}')
    k('s_mov_b32 s43, 0')
    k(f'{poll}:')
    if kind=='all':
        k(f'buffer_load_dwordx4 v[{vt+2}:{vt+5}], v{vt}, s[{S_WS}:{S_WS+3}], 0 offen sc1')
    else:
        k(f'buffer_load_dword v{vt+2}, v{vt}, s[{S_WS}:{S_WS+3}], 0 offen sc1')
    k('s_add_u32 s43, s43, 1')
    k(f's_cmp_gt_u32 s43, {SPIN_MAX}')
    k(f's_cbranch_scc1 {skip}')
    k('s_waitcnt vmcnt(0)')
    if kind=='all':
        k(f'v_and_b32 v{vt+2}, v{vt+2}, v{vt+3}')
        k(f'v_and_b32 v{vt+4}, v{vt+4}, v{vt+5}')
        k(f'v_and_b32 v{vt+2}, v{vt+2}, v{vt+4}')
    k(f'v_cmp_ne_u32 vcc, 1, v{vt+2}')
    k(f's_cbranch_vccnz {poll}')
    k(f'{skip}:')
    k('s_waitcnt vmcnt(0)')
    k('s_barrier')

class Stamper:
    def __init__(self, k):
        self.k=k; self.n=0; self.names=[]
    def __call__(self, nm):
        import mcommon
        if not mcommon.STAMPS: return
        i=self.n; self.n+=1; self.names.append(nm)
        assert i<31
        self.k('s_memrealtime s[96:97]')
        self.k('s_waitcnt lgkmcnt(0)')
        self.k(f's_mov_b32 s{64+i}, s96')
    def flush(self):
        import mcommon
        if not mcommon.STAMPS: return
        self('end')
        k=self.k
        k(f's_lshl_b32 s42, s2, 3')
        k(f's_add_u32 s42, s42, s{S_WAVE}')
        k(f's_lshl_b32 s42, s42, 7')
        k(f's_add_u32 s42, s42, {WS_TS}')
        k('v_mov_b32 v1, s42')
        k('s_mov_b64 exec, 1')
        for i in range(self.n):
            k(f'v_mov_b32 v2, s{64+i}')
            k(f'buffer_store_dword v2, v1, s[{S_WS}:{S_WS+3}], 0 offen offset:{4*i}')
        k('s_waitcnt vmcnt(0)')
        open('stamp_names.txt','w').write(repr(self.names))
```

```python
import sys
sys.path.insert(0,'gen')
import mcommon
from mcommon import *
from ka import softmax_pair as _sp_unused
WS=f's[{S_WS}:{S_WS+3}]'

def phase_init_p0(k, ts):
    k(f'''
    s_load_dwordx2 s[4:5], s[0:1], {ARG['ws']}
    s_load_dwordx2 s[{S_DBG}:{S_DBG+1}], s[0:1], {ARG['dbg']}
    s_load_dwordx2 s[{S_A}:{S_A+1}], s[0:1], {ARG['k']}
    s_load_dwordx2 s[{S_B}:{S_B+1}], s[0:1], {ARG['v']}
    s_load_dwordx2 s[{S_C}:{S_C+1}], s[0:1], {ARG['shift']}
    s_load_dwordx2 s[{S_D}:{S_D+1}], s[0:1], {ARG['ssmk']}
    s_load_dwordx2 s[44:45], s[0:1], {ARG['wphi']}
    s_getreg_b32 s37, hwreg(HW_REG_XCC_ID, 0, 4)
    v_and_b32 v1, 63, v0
    v_lshrrev_b32 v2, 6, v0
    s_and_b32 s{S_G}, s2, 7
    s_lshr_b32 s{S_J}, s2, 3
    v_readfirstlane_b32 s{S_WAVE}, v2
    s_mov_b32 s{S_MASK}, 0xffff0000
    s_mov_b32 s{S_L2E}, 0x3fb8aa3b
    s_mov_b32 s{S_NL2E}, 0xbfb8aa3b
    s_mov_b32 s{S_DBG+2}, 256
    s_mov_b32 s{S_DBG+3}, 0x20000
    s_mov_b32 s{S_A+2}, {4*MB}
    s_mov_b32 s{S_A+3}, 0x20000
    s_mov_b32 s{S_B+2}, {4*MB}
    s_mov_b32 s{S_B+3}, 0x20000
    s_mov_b32 s{S_C+2}, 8192
    s_mov_b32 s{S_C+3}, 0x20000
    s_mov_b32 s{S_D+2}, {4*MB}
    s_mov_b32 s{S_D+3}, 0x20000
    s_mov_b32 s46, 65536
    s_mov_b32 s47, 0x20000
    ''')
    k(f'''
    v_and_b32 v3, 7, v1
    v_lshrrev_b32 v4, 3, v1
    s_and_b32 s48, s{S_WAVE}, 1
    s_lshl_b32 s49, s{S_J}, 1
    s_add_u32 s48, s48, s49
    s_lshl_b32 s48, s48, 5
    s_lshr_b32 s49, s{S_WAVE}, 1
    s_lshl_b32 s50, s{S_G}, 2
    s_add_u32 s49, s49, s50
    s_lshl_b32 s49, s49, 5
    v_lshl_add_u32 v5, v4, 2, s49
    v_lshl_add_u32 v6, v3, 2, s48
    v_subrev_u32 v7, 3, v6
    v_lshlrev_b32 v7, 11, v7
    v_lshl_add_u32 v8, v5, 1, v7
    s_waitcnt lgkmcnt(0)
    ''')
    srd(k, S_WS, 4, 5, WS_SIZE)
    ts('start')
    vm = Q(k,'vmcnt',63)
    z=uid('z')
    k(f'''
    s_cmp_lg_u32 s{S_WAVE}, 0
    s_cbranch_scc1 {z}
    s_lshl_b32 s42, s{S_G}, 7
    s_lshl_b32 s43, s{S_J}, 2
    s_add_u32 s42, s42, s43
    v_lshl_add_u32 v9, v1, 10, s42
    s_lshl_b32 s42, s{S_J}, 7
    s_lshl_b32 s43, s{S_G}, 2
    s_add_u32 s42, s42, s43
    s_add_u32 s42, s42, {F_KV-7*4096}
    v_lshl_add_u32 v10, v1, 12, s42
    v_cmp_gt_u32 vcc, 7, v1
    v_mov_b32 v11, 0
    v_cndmask_b32 v9, v10, v9, vcc
    v_add_u32 v9, {WS_FLAG}, v9
    s_mov_b32 exec_lo, 0x1ff
    s_mov_b32 exec_hi, 0
    buffer_store_dword v11, v9, {WS}, 0 offen sc1
    s_mov_b64 exec, -1
    {z}:
    ''')
    for i in range(7):
        k(f'v_add_u32 v{10+i}, {2048*i}, v8')
    k('v_lshlrev_b32 v9, 3, v5')
    k(f'buffer_load_dwordx4 v[42:45], v9, s[{S_C}:{S_C+3}], 0 offen')
    k(f'buffer_load_dwordx4 v[46:49], v9, s[{S_C}:{S_C+3}], 0 offen offset:16')
    for i in range(7):
        k(f'buffer_load_dwordx2 v[{20+2*i}:{21+2*i}], v{10+i}, s[{S_A}:{S_A+3}], 0 offen')
    for j in range(4):
        k(f'buffer_load_dwordx2 v[{34+2*j}:{35+2*j}], v{13+j}, s[{S_B}:{S_B+3}], 0 offen')
    k(f'''
    s_and_b32 s51, s{S_WAVE}, 3
    s_lshr_b32 s52, s{S_WAVE}, 2
    s_lshl_b32 s53, s{S_G}, 7
    s_lshl_b32 s54, s{S_J}, 2
    s_add_u32 s53, s53, s54
    s_add_u32 s53, s53, s51
    s_lshl_b32 s54, s53, 12
    s_lshl_b32 s55, s52, 11
    s_add_u32 s55, s55, s54
    v_lshlrev_b32 v50, 5, v1
    v_add_u32 v51, s55, v50
    v_subrev_u32 v52, 8, v51
    v_or_b32 v53, s52, v1
    v_cmp_eq_u32 vcc, 0, v53
    v_mov_b32 v54, 0x7ffffff0
    v_cndmask_b32 v52, v52, v54, vcc
    buffer_load_dwordx2 v[220:221], v52, s[{S_D}:{S_D+3}], 0 offen
    buffer_load_dwordx4 v[222:225], v51, s[{S_D}:{S_D+3}], 0 offen
    buffer_load_dwordx4 v[226:229], v51, s[{S_D}:{S_D+3}], 0 offen offset:16
    ''')
    k(f'''
    v_and_b32 v55, 31, v1
    v_lshrrev_b32 v56, 5, v1
    s_lshl_b32 s56, s{S_J}, 11
    v_lshlrev_b32 v57, 8, v56
    v_lshl_add_u32 v57, v55, 1, v57
    v_add_u32 v57, s56, v57
    ''')
    for i in range(2):
        for jj in range(8):
            d = 16*i + 8*(jj>>2) + (jj&3)
            k(f'buffer_load_ushort v{200+8*i+jj}, v57, s[44:47], 0 offen offset:{d*64}')
    z=uid('z')
    k(f'''
    s_cmp_lg_u32 s{S_WAVE}, 0
    s_cbranch_scc1 {z}
    s_lshl_b32 s42, s{S_G}, 5
    s_add_u32 s42, s42, s{S_J}
    s_or_b32 s43, s37, 0x80
    v_mov_b32 v58, s42
    v_mov_b32 v59, s43
    s_waitcnt vmcnt(32)
    s_mov_b64 exec, 1
    buffer_store_byte v59, v58, s[{S_DBG}:{S_DBG+3}], 0 offen sc1
    s_mov_b64 exec, -1
    {z}:
    ''')
    k('v_lshlrev_b32 v58, 2, v56')
    k('v_sub_u32 v58, v55, v58')
    k('v_mov_b32 v60, 0x3f80')
    k('v_mov_b32 v61, 0x3f800000')
    for i in range(2):
        for p in range(4):
            c0 = 16*i + 8*(p>>1) + 2*(p&1)
            r = 248+4*i+p
            k(f'v_cmp_eq_u32 vcc, {c0}, v58')
            k(f'v_cmp_eq_u32 s[42:43], {c0+1}, v58')
            k(f'v_cndmask_b32 v{r}, 0, v60, vcc')
            k(f'v_cndmask_b32 v59, 0, v61, s[42:43]')
            k(f'v_or_b32 v{r}, v{r}, v59')
    k('s_waitcnt vmcnt(0)')
    ts('p0 loaded')
    for i in range(2):
        for p in range(4):
            k(f'v_lshl_or_b32 v{240+4*i+p}, v{200+8*i+2*p+1}, 16, v{200+8*i+2*p}')
    M=f's{S_MASK}'
    W = lambda c,t: 60+4*c+t
    for c in range(4):
        for h in range(2):
            src = 42+2*c+h
            k(f'v_lshlrev_b32 v{W(c,2*h)}, 16, v{src}')
            k(f'v_and_b32 v{W(c,2*h+1)}, {M}, v{src}')
    K = lambda i,c: 76+4*i+c
    V = lambda j,c: 104+4*j+c
    for i in range(7):
        for h in range(2):
            k(f'v_lshlrev_b32 v{K(i,2*h)}, 16, v{20+2*i+h}')
            k(f'v_and_b32 v{K(i,2*h+1)}, {M}, v{20+2*i+h}')
    for j in range(4):
        for h in range(2):
            k(f'v_lshlrev_b32 v{V(j,2*h)}, 16, v{34+2*j+h}')
            k(f'v_and_b32 v{V(j,2*h+1)}, {M}, v{34+2*j+h}')
    A = lambda j,c: 120+4*j+c
    P = lambda j,c: 136+4*j+c
    T = lambda j,h: 152+2*j+h
    def rnd(R):
        for j in range(4):
            for h in range(2):
                k(f'v_cvt_pk_bf16_f32 v{T(j,h)}, v{R(j,2*h)}, v{R(j,2*h+1)}')
        for j in range(4):
            for h in range(2):
                k(f'v_lshlrev_b32 v{R(j,2*h)}, 16, v{T(j,h)}')
                k(f'v_and_b32 v{R(j,2*h+1)}, {M}, v{T(j,h)}')
    for j in range(4):
        for c in range(4): k(f'v_mul_f32 v{A(j,c)}, v{K(j,c)}, v{W(c,3)}')
    rnd(A)
    for t in range(1,4):
        for j in range(4):
            for c in range(4): k(f'v_mul_f32 v{P(j,c)}, v{K(j+t,c)}, v{W(c,3-t)}')
        rnd(P)
        for j in range(4):
            for c in range(4): k(f'v_add_f32 v{A(j,c)}, v{A(j,c)}, v{P(j,c)}')
        rnd(A)
    for j in range(4):
        for c in range(4): k(f'v_mul_f32 v{A(j,c)}, v{A(j,c)}, v{V(j,c)}')
    for c in range(4):
        k(f'v_cvt_pk_bf16_f32 v{20+2*c}, v{A(0,c)}, v{A(1,c)}')
        k(f'v_cvt_pk_bf16_f32 v{21+2*c}, v{A(2,c)}, v{A(3,c)}')
    k(f'v_mul_u32_u24 v9, {UTS}, v5')
    k('v_lshl_add_u32 v9, v6, 1, v9')
    poll,done=uid('ip'),uid('id')
    k(f'''
    v_lshlrev_b32 v28, 2, v1
    s_mov_b32 s43, 0
    s_or_b32 s44, s37, 0x80
    s_mul_i32 s44, s44, 0x01010101
    s_mov_b32 s45, 0x80808080
    {poll}:
    buffer_load_dword v29, v28, s[{S_DBG}:{S_DBG+3}], 0 offen sc1
    s_add_u32 s43, s43, 1
    s_cmp_gt_u32 s43, {SPIN_MAX}
    s_cbranch_scc1 {done}
    s_waitcnt vmcnt(0)
    v_and_b32 v30, s45, v29
    v_cmp_ne_u32 vcc, s45, v30
    s_cbranch_vccnz {poll}
    {done}:
    s_waitcnt vmcnt(0)
    v_cmp_eq_u32 vcc, s44, v29
    s_lshl_b32 s42, s{S_G}, 3
    s_lshr_b64 s[42:43], vcc, s42
    s_and_b32 s42, s42, 0xff
    s_cmp_eq_u32 s42, 0xff
    s_cselect_b32 s{S_PURE}, 1, 0
    ''')
    lstores(k, sum([[f's_mov_b32 s42, {WS_UT+UTS*c}', f'buffer_store_dwordx2 v[{20+2*c}:{21+2*c}], v9, {WS}, s42 offen'] for c in range(4)], []))
    ts('p0 stored')

ACH=16640; ACP=4160; UB=4*ACH; UCH=4608
def phase_conv(k, ts):
    k(f'''
    s_mul_i32 s45, s51, {ACH}
    v_mov_b32 v20, 0
    v_mov_b32 v21, 0
    v_lshrrev_b32 v22, 4, v1
    v_mul_u32_u24 v22, {ACP}, v22
    v_and_b32 v23, 15, v1
    v_lshl_add_u32 v22, v23, 2, v22
    v_add_u32 v22, s45, v22
    ds_write_b32 v22, v20
    s_mul_i32 s46, s51, {UCH}
    s_add_u32 s46, s46, {UB}
    s_lshl_b32 s47, s52, 8
    s_add_u32 s47, s47, s46
    v_lshl_add_u32 v22, v1, 2, s47
    ds_write_b32 v22, v20
    s_lshl_b32 s47, s52, 11
    s_add_u32 s47, s47, s45
    s_add_u32 s47, s47, 64
    v_lshlrev_b32 v24, 5, v1
    v_add_u32 v24, s47, v24
    ''')
    F=26; G=34; H=44; T0=220
    for i in range(8): k(f'v_mov_b32 v{F+i}, v{T0+1+i}')
    for i in range(9): k(f'v_alignbit_b32 v{G+i}, v{T0+1+i}, v{T0+i}, 16')
    for i in range(8): k(f'v_alignbit_b32 v{H+i}, v{T0+2+i}, v{T0+1+i}, 16')
    k(f'''
    ds_write_b128 v24, v[{T0+2}:{T0+5}]
    ds_write_b128 v24, v[{T0+6}:{T0+9}] offset:16
    ds_write_b128 v24, v[{H}:{H+3}] offset:{ACP}
    ds_write_b128 v24, v[{H+4}:{H+7}] offset:{ACP+16}
    ds_write_b128 v24, v[{F}:{F+3}] offset:{2*ACP}
    ds_write_b128 v24, v[{F+4}:{F+7}] offset:{2*ACP+16}
    ds_write_b128 v24, v[{G}:{G+3}] offset:{3*ACP}
    ds_write_b128 v24, v[{G+4}:{G+7}] offset:{3*ACP+16}
    ''')
    k(f'''
    s_load_dwordx2 s[42:43], s[0:1], {ARG['ssmd']}
    s_lshr_b32 s44, s53, 1
    s_lshl_b32 s44, s44, 2
    s_waitcnt lgkmcnt(0)
    s_load_dword s38, s[42:43], s44
    ''')
    publish(k, F_P0, True)
    ts('p0 published')
    wait_flags(k, F_P0, 'group')
    ts('p0 waited')
    k(f'''
    s_mul_i32 s44, s53, {UTS}
    s_lshl_b32 s47, s52, 11
    s_add_u32 s44, s44, s47
    s_add_u32 s44, s44, {WS_UT}
    v_lshl_add_u32 v8, v1, 4, s44
    s_add_u32 s47, s47, s46
    s_add_u32 m0, s47, 512
    s_nop 0
    buffer_load_dwordx4 v8, {WS}, 0 offen sc1 lds
    buffer_load_dwordx4 v8, {WS}, 0 offen offset:1024 sc1 lds
    ''')
    prep,join=uid('prep'),uid('join')
    k(f'''
    s_cmp_ge_u32 s{S_WAVE}, 4
    s_cbranch_scc1 {prep}
    s_waitcnt vmcnt(0) lgkmcnt(0)
    s_barrier
    ''')
    ts('conv start')
    k(f'''
    v_lshrrev_b32 v3, 4, v1
    v_bfe_u32 v6, v1, 2, 2
    v_and_b32 v7, 3, v1
    v_mul_u32_u24 v8, {ACP}, v6
    v_lshlrev_b32 v9, 4, v3
    v_sub_u32 v8, v8, v9
    v_lshl_add_u32 v8, v7, 3, v8
    s_add_u32 s47, s45, 88
    v_add_u32 v2, s47, v8
    v_and_b32 v4, 15, v1
    v_lshlrev_b32 v8, 5, v4
    v_lshl_add_u32 v8, v3, 4, v8
    s_add_u32 s47, s46, 32
    v_add_u32 v5, s47, v8
    ''')
    VA, VB = 2, 5
    ACC = lambda J: 8+4*J
    BF = lambda st,mu: 40+32*st+4*mu
    AF = lambda n: 104+4*(n%3)
    for i in range(32): k(f'v_mov_b32 v{8+i}, 0')
    lg = Q(k,'lgkmcnt',15)
    def rdB(rho, mu):
        m = 8*mu - rho
        r = BF(rho&1, mu)
        k(f'ds_read_b128 v[{r}:{r+3}], v{VB} offset:{64*(m+7)}'); lg.issue(('B',rho,mu))
    def rdA(n):
        rho,i = n//8, n%8
        kap = 8*i+rho; r = AF(n)
        k(f'ds_read_b64_tr_b16 v[{r}:{r+1}], v{VA} offset:{64*kap+8}'); lg.issue(('A',n))
        k(f'ds_read_b64_tr_b16 v[{r+2}:{r+3}], v{VA} offset:{64*kap}'); lg.issue(('A',n))
    rdA(0)
    for mu in range(8): rdB(0,mu)
    rdA(1)
    for rho in range(8):
        for i in range(8):
            n = 8*rho+i
            if n+2 < 64: rdA(n+2)
            if rho<7 and i<4:
                rdB(rho+1, 2*i); rdB(rho+1, 2*i+1)
            lg.wait(('A',n))
            for J in range(i,8):
                lg.wait(('B',rho,J-i))
                a=ACC(J)
                k(f'v_mfma_f32_16x16x32_bf16 v[{a}:{a+3}], v[{AF(n)}:{AF(n)+3}], v[{BF(rho&1,J-i)}:{BF(rho&1,J-i)+3}], v[{a}:{a+3}]')
    ts('conv main')
    M=f's{S_MASK}'
    k(f'''
    s_waitcnt lgkmcnt(0)
    s_and_b32 s48, s53, 1
    s_lshl_b32 s48, s48, 4
    s_lshr_b32 s38, s38, s48
    s_lshl_b32 s38, s38, 16
    v_lshlrev_b32 v6, 5, v4
    v_lshl_add_u32 v6, v3, 3, v6
    s_add_u32 s47, s46, 512
    v_add_u32 v6, s47, v6
    ''')
    for J in range(8): k(f'ds_read_b64 v[{40+2*J}:{41+2*J}], v6 offset:{512*J}')
    for p in range(16): k(f'v_cvt_pk_bf16_f32 v{56+p}, v{8+2*p}, v{9+2*p}')
    for p in range(16):
        k(f'v_lshlrev_b32 v{8+2*p}, 16, v{56+p}')
        k(f'v_and_b32 v{9+2*p}, {M}, v{56+p}')
    k('s_waitcnt lgkmcnt(0)')
    for i in range(16):
        k(f'v_lshlrev_b32 v{72+2*i}, 16, v{40+i}')
        k(f'v_and_b32 v{73+2*i}, {M}, v{40+i}')
    for i in range(32): k(f'v_mul_f32 v{72+i}, s38, v{72+i}')
    for i in range(16): k(f'v_cvt_pk_bf16_f32 v{40+i}, v{72+2*i}, v{73+2*i}')
    for i in range(16):
        k(f'v_lshlrev_b32 v{72+2*i}, 16, v{40+i}')
        k(f'v_and_b32 v{73+2*i}, {M}, v{40+i}')
    for i in range(32): k(f'v_add_f32 v{72+i}, v{8+i}, v{72+i}')
    for i in range(16): k(f'v_cvt_pk_bf16_f32 v{40+i}, v{72+2*i}, v{73+2*i}')
    for J in range(8): k(f'ds_write_b64 v6, v[{40+2*J}:{41+2*J}] offset:{512*J}')
    k(f's_branch {join}')
    k(f'{prep}:')
    k('s_waitcnt vmcnt(0) lgkmcnt(0)')
    k('s_barrier')
    wo=uid('wo')
    k(f'''
    s_load_dwordx2 s[{S_A}:{S_A+1}], s[0:1], {ARG['wqkv']}
    s_load_dwordx2 s[{S_B}:{S_B+1}], s[0:1], {ARG['wo']}
    s_mov_b32 s{S_A+2}, {6*MB}
    s_mov_b32 s{S_B+2}, {2*MB}
    s_lshl_b32 s54, s{S_G}, 5
    s_add_u32 s54, s54, s{S_J}
    s_lshl_b32 s54, s54, 2
    s_add_u32 s54, s54, s51
    s_waitcnt lgkmcnt(0)
    s_cmp_ge_u32 s54, 768
    s_cbranch_scc1 {wo}
    s_mul_i32 s55, s54, 43691
    s_lshr_b32 s55, s55, 18
    s_mul_i32 s56, s55, 6
    s_sub_u32 s56, s54, s56
    s_mul_i32 s57, s55, {8*6144}
    s_lshl_b32 s58, s56, 10
    s_add_u32 s57, s57, s58
    v_lshl_add_u32 v3, v1, 4, s57
    ''')
    for j in range(8):
        k(f's_mov_b32 s59, {j*6144}')
        k(f'buffer_load_dwordx4 v[{8+4*j}:{11+4*j}], v3, s[{S_A}:{S_A+3}], s59 offen')
    k(f'''
    s_and_b32 s60, s56, 1
    s_lshl_b32 s60, s60, 4
    v_lshrrev_b32 v4, 2, v1
    v_add_u32 v4, s60, v4
    s_mov_b32 s61, 196608
    v_mul_lo_u32 v4, s61, v4
    s_lshr_b32 s62, s55, 1
    s_mul_i32 s62, s62, 3072
    s_lshr_b32 s63, s56, 1
    s_lshl_b32 s63, s63, 10
    s_add_u32 s62, s62, s63
    s_and_b32 s63, s55, 1
    s_lshl_b32 s63, s63, 9
    s_add_u32 s62, s62, s63
    s_add_u32 s62, s62, {WS_WQ}
    v_and_b32 v5, 3, v1
    v_lshl_add_u32 v4, v5, 7, v4
    v_add_u32 v4, s62, v4
    ''')
    def transpose_store():
        k('s_mov_b32 s60, 0x05040100')
        k('s_mov_b32 s61, 0x07060302')
        k('s_waitcnt vmcnt(0)')
        for m in range(8):
            for p in range(4):
                sel = 's61' if m&1 else 's60'
                k(f'v_perm_b32 v{40+4*m+p}, v{8+4*(2*p+1)+(m>>1)}, v{8+4*(2*p)+(m>>1)}, {sel}')
        for m in range(8):
            k(f'buffer_store_dwordx4 v[{40+4*m}:{43+4*m}], v4, {WS}, 0 offen offset:{16*m} sc1')
    transpose_store()
    k(f's_branch {join}')
    k(f'{wo}:')
    k(f'''
    s_sub_u32 s54, s54, 768
    s_lshr_b32 s55, s54, 1
    s_and_b32 s56, s54, 1
    s_mul_i32 s57, s55, {8*2048}
    s_lshl_b32 s58, s56, 10
    s_add_u32 s57, s57, s58
    v_lshl_add_u32 v3, v1, 4, s57
    ''')
    for j in range(8):
        k(f's_mov_b32 s59, {j*2048}')
        k(f'buffer_load_dwordx4 v[{8+4*j}:{11+4*j}], v3, s[{S_B}:{S_B+3}], s59 offen')
    k(f'''
    s_lshl_b32 s60, s56, 3
    v_lshrrev_b32 v4, 3, v1
    v_add_u32 v4, s60, v4
    v_lshlrev_b32 v4, 17, v4
    v_bfe_u32 v5, v1, 2, 1
    v_lshl_add_u32 v4, v5, 10, v4
    v_and_b32 v5, 3, v1
    v_lshl_add_u32 v4, v5, 7, v4
    s_lshr_b32 s62, s55, 1
    s_lshl_b32 s62, s62, 11
    s_and_b32 s63, s55, 1
    s_lshl_b32 s63, s63, 9
    s_add_u32 s62, s62, s63
    s_add_u32 s62, s62, {WS_WO}
    v_add_u32 v4, s62, v4
    ''')
    transpose_store()
    k(f'{join}:')
    ts('join')
    k(f'''
    s_waitcnt lgkmcnt(0)
    s_barrier
    v_lshlrev_b32 v6, 3, v0
    v_add_u32 v6, {UB+512}, v6
    ''')
    for ch in range(4): k(f'ds_read_b64 v[{8+2*ch}:{9+2*ch}], v6 offset:{ch*UCH}')
    k(f'''
    s_mov_b32 s60, 0x05040100
    s_mov_b32 s61, 0x07060302
    s_lshl_b32 s54, s{S_G}, 5
    s_add_u32 s54, s54, s{S_J}
    s_mul_i32 s54, s54, {CS4}
    s_add_u32 s54, s54, {WS_Y}
    v_lshl_add_u32 v7, v0, 5, s54
    s_waitcnt lgkmcnt(0)
    ''')
    for i in range(4):
        sel = 's61' if i&1 else 's60'; dw=i>>1
        k(f'v_perm_b32 v{16+2*i}, v{10+dw}, v{8+dw}, {sel}')
        k(f'v_perm_b32 v{17+2*i}, v{14+dw}, v{12+dw}, {sel}')
    k(f'buffer_store_dwordx4 v[16:19], v7, {WS}, 0 offen sc1')
    k(f'buffer_store_dwordx4 v[20:23], v7, {WS}, 0 offen offset:16 sc1')
    publish(k, F_CONV, False)
    ts('conv published')

E_LDS = LDS_TOTAL-2048
def ka_dma(k, slab, vm=None):
    k(f's_add_u32 m0, s57, {(slab%3)*SLAB}')
    k(f's_mov_b32 s44, {WS_WQ+slab*SLAB}')
    for t in range(3):
        k(f'buffer_load_dwordx4 v236, {WS}, s44 offen offset:{t*1024} lds')
        if vm: vm.issue(('dma',slab))
def ka_addr(k):
    k(f'''
    s_mul_i32 s56, s{S_J}, 196608
    s_mul_i32 s57, s{S_WAVE}, 3072
    s_add_u32 s56, s56, s57
    v_and_b32 v236, 63, v0
    v_lshl_add_u32 v236, v236, 4, s56
    ''')

def phase_e(k, ts, layer):
    M=f's{S_MASK}'
    first = layer==0
    xout = WS_X1 if first else WS_X3
    k(f'''
    v_and_b32 v1, 7, v0
    v_lshrrev_b32 v2, 3, v0
    s_lshl_b32 s42, s{S_G}, 8
    s_lshl_b32 s43, s{S_J}, 3
    s_add_u32 s42, s42, s43
    v_add_u32 v3, s42, v1
    v_lshrrev_b32 v4, 6, v0
    v_mul_u32_u24 v5, {CS8}, v2
    v_lshl_add_u32 v5, v3, 4, v5
    v_mul_u32_u24 v7, {2*CS4}, v2
    v_lshl_add_u32 v7, v3, 3, v7
    v_lshlrev_b32 v96, 6, v1
    v_add_u32 v96, {E_LDS}, v96
    v_lshl_add_u32 v97, v4, 3, v96
    ''')
    X = lambda i: 24+i
    T = lambda i: 40+i
    P = lambda i: 56+i
    Yf = lambda i: 64+i
    def unpack(dst, src, n=8):
        for i in range(n):
            k(f'v_lshlrev_b32 v{dst(2*i)}, 16, v{src(i)}')
            k(f'v_and_b32 v{dst(2*i+1)}, {M}, v{src(i)}')
    def pack(dst, src, n=8):
        for i in range(n): k(f'v_cvt_pk_bf16_f32 v{dst(i)}, v{src(2*i)}, v{src(2*i+1)}')
    def stats(ldsoff):
        k(f'v_add_f32 v98, v{X(0)}, v{X(1)}')
        k(f'v_add_f32 v102, v{X(2)}, v{X(3)}')
        k(f'v_mul_f32 v99, v{X(0)}, v{X(0)}')
        k(f'v_mul_f32 v103, v{X(1)}, v{X(1)}')
        k(f'v_fmac_f32 v99, v{X(2)}, v{X(2)}')
        k(f'v_fmac_f32 v103, v{X(3)}, v{X(3)}')
        for i in range(4,16,2):
            k(f'v_add_f32 v98, v98, v{X(i)}')
            k(f'v_add_f32 v102, v102, v{X(i+1)}')
            k(f'v_fmac_f32 v99, v{X(i)}, v{X(i)}')
            k(f'v_fmac_f32 v103, v{X(i+1)}, v{X(i+1)}')
        k('''
        v_add_f32 v98, v98, v102
        v_add_f32 v99, v99, v103
        v_add_f32_dpp v98, v98, v98 row_ror:8 row_mask:0xf bank_mask:0xf
        v_add_f32_dpp v99, v99, v99 row_ror:8 row_mask:0xf bank_mask:0xf
        v_mov_b32 v102, v98
        v_mov_b32 v103, v99
        v_permlane16_swap_b32 v98, v102
        v_permlane16_swap_b32 v99, v103
        v_add_f32 v98, v98, v102
        v_add_f32 v99, v99, v103
        v_mov_b32 v102, v98
        v_mov_b32 v103, v99
        v_permlane32_swap_b32 v98, v102
        v_permlane32_swap_b32 v99, v103
        v_add_f32 v98, v98, v102
        v_add_f32 v99, v99, v103
        ''')
        k(f'ds_write_b64 v97, v[98:99] offset:{ldsoff}')
        k('s_waitcnt lgkmcnt(0)')
        k('s_barrier')
        for i in range(4): k(f'ds_read_b128 v[{104+4*i}:{107+4*i}], v96 offset:{ldsoff+16*i}')
        k('s_waitcnt lgkmcnt(0)')
        k(f'''
        v_add_f32 v104, v104, v106
        v_add_f32 v105, v105, v107
        v_add_f32 v108, v108, v110
        v_add_f32 v109, v109, v111
        v_add_f32 v112, v112, v114
        v_add_f32 v113, v113, v115
        v_add_f32 v116, v116, v118
        v_add_f32 v117, v117, v119
        v_add_f32 v104, v104, v108
        v_add_f32 v105, v105, v109
        v_add_f32 v112, v112, v116
        v_add_f32 v113, v113, v117
        v_add_f32 v104, v104, v112
        v_add_f32 v105, v105, v113
        v_mul_f32 v104, 0x3a800000, v104
        v_mul_f32 v105, 0x3a800000, v105
        v_fma_f32 v105, -v104, v104, v105
        v_max_f32 v105, 0, v105
        v_cvt_pk_bf16_f32 v106, v104, v105
        v_lshlrev_b32 v100, 16, v106
        v_and_b32 v105, {M}, v106
        v_add_f32 v105, 0x3727c5ac, v105
        v_cvt_pk_bf16_f32 v106, v105, v105
        v_and_b32 v105, {M}, v106
        v_sqrt_f32 v105, v105
        v_cvt_pk_bf16_f32 v106, v105, v105
        v_and_b32 v105, {M}, v106
        v_rcp_f32 v101, v105
        ''')
    def normalize():
        for i in range(16): k(f'v_sub_f32 v{T(i)}, v{X(i)}, v100')
        pack(P, T); unpack(T, P)
        for i in range(16): k(f'v_mul_f32 v{T(i)}, v{T(i)}, v101')
        pack(P, T)
    def yloads():
        k(f's_mov_b32 s42, {WS_Y}')
        k(f's_mov_b32 s43, {WS_Y+CS4}')
        k(f's_mov_b32 s44, {WS_Y+128*CS4}')
        k(f's_mov_b32 s45, {WS_Y+129*CS4}')
        for i in range(4):
            k(f'buffer_load_dwordx2 v[{16+2*i}:{17+2*i}], v7, {WS}, s{42+i} offen sc1')
    ka_addr(k)
    if first:
        k(f'''
        s_load_dwordx2 s[{S_A}:{S_A+1}], s[0:1], {ARG['q']}
        s_mov_b32 s{S_A+2}, {4*MB}
        v_lshlrev_b32 v6, 11, v3
        v_lshl_add_u32 v6, v2, 4, v6
        s_waitcnt lgkmcnt(0)
        buffer_load_dwordx4 v[8:11], v6, s[{S_A}:{S_A+3}], 0 offen
        buffer_load_dwordx4 v[12:15], v6, s[{S_A}:{S_A+3}], 0 offen offset:1024
        s_waitcnt vmcnt(0)
        ''')
        unpack(X, lambda i: 8+i)
        stats(0)
        normalize()
        unpack(T, P)
        ts('e pre')
        wait_flags(k, F_CONV, 'all')
        ts('e waited')
        yloads()
        ka_dma(k,0); ka_dma(k,1)
        k('s_waitcnt vmcnt(6)')
    else:
        yloads()
        ka_dma(k,0); ka_dma(k,1)
        wait_flags(k, F_KB0, 'group')
        ts('e waited')
        k(f'''
        s_mov_b32 s42, {WS_X2}
        s_mov_b32 s43, {WS_X2+64*CS8}
        buffer_load_dwordx4 v[8:11], v5, {WS}, s42 offen sc1
        buffer_load_dwordx4 v[12:15], v5, {WS}, s43 offen sc1
        s_waitcnt vmcnt(0)
        ''')
        unpack(X, lambda i: 8+i)
        stats(0)
        normalize()
        unpack(T, P)
    unpack(Yf, lambda i: 16+i)
    for i in range(16): k(f'v_mul_f32 v{T(i)}, v{T(i)}, v{Yf(i)}')
    pack(P, T); unpack(T, P)
    for i in range(16): k(f'v_add_f32 v{X(i)}, v{X(i)}, v{T(i)}')
    XP = lambda i: 80+i
    pack(XP, X); unpack(X, XP)
    lstores(k, [f's_mov_b32 s42, {xout}', f's_mov_b32 s43, {xout+64*CS8}',
                f'buffer_store_dwordx4 v[80:83], v5, {WS}, s42 offen', f'buffer_store_dwordx4 v[84:87], v5, {WS}, s43 offen'])
    stats(512)
    normalize()
    lstores(k, [f's_mov_b32 s42, {WS_XN[layer]}', f's_mov_b32 s43, {WS_XN[layer]+64*CS8}',
                f'buffer_store_dwordx4 v[56:59], v5, {WS}, s42 offen', f'buffer_store_dwordx4 v[60:63], v5, {WS}, s43 offen'])
    publish(k, F_E0+layer, True)
    ts('e published')

SLAB=24576; RED_Z=65536; KVA=67584; ZA=71680
from ka import mfma
def softmax_pair(k, src, EP, EN, outP, outN, tmp):
    import ka
    ka.softmax_pair(k, src, EP, EN, outP, outN, tmp)

KB_BASE=[73728, 73728+32768, 0, 32768]
def kb_addr(k):
    k(f'''
    s_lshr_b32 s58, s{S_J}, 1
    s_and_b32 s59, s{S_WAVE}, 3
    s_lshr_b32 s60, s{S_WAVE}, 2
    s_lshl_b32 s61, s59, 12
    s_lshl_b32 s62, s60, 14
    s_add_u32 s61, s61, s62
    s_lshl_b32 s62, s59, 12
    s_lshl_b32 s63, s60, 16
    s_add_u32 s62, s62, s63
    s_lshl_b32 s63, s58, 17
    s_add_u32 s62, s62, s63
    v_and_b32 v237, 63, v0
    v_lshl_add_u32 v237, v237, 4, s62
    ''')
def kb_dma(k, s, vm=None):
    k(f's_add_u32 m0, s61, {KB_BASE[s]}')
    k(f's_mov_b32 s44, {WS_WO+s*16384}')
    for t in range(4):
        k(f'buffer_load_dwordx4 v237, {WS}, s44 offen offset:{t*1024} lds')
        if vm: vm.issue(('dma',s))

def phase_ka(k, ts, layer):
    vm = Q(k,'vmcnt',63); lg = Q(k,'lgkmcnt',15)
    k(f'''
    v_and_b32 v1, 63, v0
    v_and_b32 v5, 31, v1
    v_lshrrev_b32 v6, 5, v1
    s_lshl_b32 s42, s{S_G}, 8
    s_lshl_b32 s43, s{S_WAVE}, 5
    s_add_u32 s42, s42, s43
    v_add_u32 v2, s42, v5
    v_lshlrev_b32 v2, 4, v2
    v_mul_u32_u24 v7, {CS8}, v6
    v_add_u32 v2, v2, v7
    v_lshlrev_b32 v3, 4, v1
    v_add_u32 v228, {2*SLAB}, v3
    ''')
    ACQ, ACK, ACV = 8, 24, 40
    for i in range(48): k(f'v_mov_b32 v{8+i}, 0')
    wait_flags(k, F_E0+layer, 'group')
    ts('ka waited')
    XB = lambda s: 56+4*(s%8)
    def xload(step):
        k(f's_mov_b32 s45, {WS_XN[layer]+step*2*CS8}')
        k(f'buffer_load_dwordx4 v[{XB(step)}:{XB(step)+3}], v2, {WS}, s45 offen sc1')
        vm.issue(('x',step))
    WB = lambda st,t: 88+12*st+4*t
    def wread(step):
        slab, j = step//8, step%8
        st = step&1
        for t in range(3):
            if slab%3==2: k(f'ds_read_b128 v[{WB(st,t)}:{WB(st,t)+3}], v228 offset:{j*3072 + t*1024}')
            else: k(f'ds_read_b128 v[{WB(st,t)}:{WB(st,t)+3}], v3 offset:{(slab%3)*SLAB + j*3072 + t*1024}')
            lg.issue(('w',step))
    for s in range(8): xload(s)
    ka_dma(k, 2, vm)
    wread(0)
    for step in range(64):
        slab, j = step//8, step%8
        if step+1 < 64: wread(step+1)
        lg.wait(('w',step))
        vm.wait(('x',step))
        st = step&1; X = XB(step)
        mfma(k, ACQ, WB(st,0), X)
        mfma(k, ACK, WB(st,1), X)
        mfma(k, ACV, X, WB(st,2))
        if step+8 < 64: xload(step+8)
        if j==3 and 1 <= slab and slab+1 < 8:
            vm.wait(('dma',slab+1))
            k('s_barrier')
            if slab+2 < 8: ka_dma(k, slab+2, vm)
    ts('ka main')
    vm.drain()
    k('s_barrier')
    kb_addr(k); kb_dma(k,0); kb_dma(k,1)
    QP = 220
    for p in range(8): k(f'v_cvt_pk_bf16_f32 v{QP+p}, v{8+2*p}, v{8+2*p+1}')
    KP, VP, PK, EP, EN = 56, 64, 72, 132, 148
    WP0, WP1, ID0, ID1 = 240, 244, 248, 252
    for p in range(8): k(f'v_cvt_pk_bf16_f32 v{KP+p}, v{ACK+2*p}, v{ACK+2*p+1}')
    mfma(k, PK, WP0, KP, 0)
    mfma(k, PK, WP1, KP+4)
    for p in range(8): k(f'v_cvt_pk_bf16_f32 v{VP+p}, v{ACV+2*p}, v{ACV+2*p+1}')
    for i in range(4): k(f'v_mov_b32 v{128+i}, 0x3f803f80')
    PHP, PHN, TMP = 88, 96, 104
    softmax_pair(k, PK, EP, EN, PHP, PHN, TMP)
    KVP, KVN, ZP, ZN = 164, 180, 196, 112
    T1, T2, PT1, PT2 = 132, 148, 72, 80
    mfma(k, T1, PHP, ID0, 0)
    mfma(k, T2, PHN, ID0, 0)
    mfma(k, T1, PHP+4, ID1)
    mfma(k, T2, PHN+4, ID1)
    for p in range(8): k(f'v_cvt_pk_bf16_f32 v{PT1+p}, v{T1+2*p}, v{T1+2*p+1}')
    for p in range(8): k(f'v_cvt_pk_bf16_f32 v{PT2+p}, v{T2+2*p}, v{T2+2*p+1}')
    mfma(k, KVP, PT1, VP, 0)
    mfma(k, ZP, PT1, 128, 0)
    mfma(k, KVN, PT2, VP, 0)
    mfma(k, ZN, PT2, 128, 0)
    mfma(k, KVP, PT1+4, VP+4)
    mfma(k, ZP, PT1+4, 128)
    mfma(k, KVN, PT2+4, VP+4)
    mfma(k, ZN, PT2+4, 128)
    ts('ka kside')
    k(f's_lshl_b32 s46, s{S_WAVE}, 13')
    k('v_add_u32 v7, s46, v3')
    for fz,base in enumerate((KVP,KVN)):
        for g in range(4):
            k(f'ds_write_b128 v7, v[{base+4*g}:{base+4*g+3}] offset:{(fz*4+g)*1024}')
    k(f'''
    s_lshl_b32 s46, s{S_WAVE}, 8
    s_add_u32 s46, s46, {RED_Z}
    v_lshlrev_b32 v7, 4, v6
    v_add_u32 v7, s46, v7
    s_mov_b32 exec_lo, 1
    s_mov_b32 exec_hi, 1
    ''')
    for fz,base in enumerate((ZP,ZN)):
        for g in range(4):
            k(f'ds_write_b128 v7, v[{base+4*g}:{base+4*g+3}] offset:{fz*128+g*32}')
    k('s_mov_b64 exec, -1')
    k('s_waitcnt lgkmcnt(0)')
    k('s_barrier')
    k(f's_lshl_b32 s46, s{S_WAVE}, 10')
    k('v_add_u32 v7, s46, v3')
    for w in range(8): k(f'ds_read_b128 v[{164+4*w}:{167+4*w}], v7 offset:{w*8192}')
    PB = WS_PART+layer*PART_LAYER
    k(f'''
    s_lshl_b32 s47, s{S_J}, 3
    s_add_u32 s47, s47, s{S_G}
    s_mul_i32 s47, s47, {PART_STRIDE}
    s_add_u32 s47, s47, {PB}
    v_add_u32 v8, s47, v7
    ''')
    def sum8(base):
        for i in range(4):
            k(f'v_add_f32 v{base+i}, v{base+i}, v{base+4+i}')
            k(f'v_add_f32 v{base+8+i}, v{base+8+i}, v{base+12+i}')
            k(f'v_add_f32 v{base+16+i}, v{base+16+i}, v{base+20+i}')
            k(f'v_add_f32 v{base+24+i}, v{base+24+i}, v{base+28+i}')
        for i in range(4):
            k(f'v_add_f32 v{base+i}, v{base+i}, v{base+8+i}')
            k(f'v_add_f32 v{base+16+i}, v{base+16+i}, v{base+24+i}')
        for i in range(4):
            k(f'v_add_f32 v{base+i}, v{base+i}, v{base+16+i}')
    k('s_waitcnt lgkmcnt(0)')
    sum8(164)
    k(f'buffer_store_dwordx4 v[164:167], v8, {WS}, 0 offen sc1')
    noz=uid('noz')
    k(f'''
    s_cmp_lg_u32 s{S_WAVE}, 0
    s_cbranch_scc1 {noz}
    v_and_b32 v9, 15, v1
    v_lshlrev_b32 v9, 4, v9
    v_add_u32 v11, {RED_Z}, v9
    ''')
    for w in range(8): k(f'ds_read_b128 v[{168+4*w}:{171+4*w}], v11 offset:{w*256}')
    k('s_waitcnt lgkmcnt(0)')
    sum8(168)
    k(f'''
    v_add_u32 v9, s47, v9
    v_add_u32 v9, 8192, v9
    s_mov_b32 exec_lo, 0xffff
    s_mov_b32 exec_hi, 0
    buffer_store_dwordx4 v[168:171], v9, {WS}, 0 offen sc1
    s_mov_b64 exec, -1
    {noz}:
    ''')
    mfma(k, PK, WP0, QP, 0)
    mfma(k, PK, WP1, QP+4)
    QHP, QHN = 88, 96
    softmax_pair(k, PK, EP, EN, QHP, QHN, TMP)
    ts('ka qside')
    publish(k, F_KV+layer*4096, False)
    wait_flags(k, F_KV+layer*4096, 'kv')
    ts('ka kv waited')
    k(f'''
    s_mul_i32 s47, s{S_J}, {8*PART_STRIDE}
    s_add_u32 s47, s47, {PB}
    v_add_u32 v8, s47, v7
    ''')
    for w in range(8):
        k(f's_mov_b32 s51, {w*PART_STRIDE}')
        k(f'buffer_load_dwordx4 v[{164+4*w}:{167+4*w}], v8, {WS}, s51 offen sc1')
    noz=uid('noz')
    k(f'''
    s_cmp_lg_u32 s{S_WAVE}, 0
    s_cbranch_scc1 {noz}
    v_and_b32 v9, 15, v1
    v_lshlrev_b32 v9, 4, v9
    v_add_u32 v10, s47, v9
    v_add_u32 v10, 8192, v10
    ''')
    for w in range(8):
        k(f's_mov_b32 s51, {w*PART_STRIDE}')
        k(f'buffer_load_dwordx4 v[{132+4*w}:{135+4*w}], v10, {WS}, s51 offen sc1')
    k('s_waitcnt vmcnt(0)')
    sum8(132)
    k(f'''
    v_cvt_pk_bf16_f32 v132, v132, v133
    v_cvt_pk_bf16_f32 v133, v134, v135
    v_and_b32 v9, 15, v1
    v_lshrrev_b32 v10, 2, v9
    v_lshlrev_b32 v10, 5, v10
    v_and_b32 v11, 1, v9
    v_lshl_add_u32 v10, v11, 4, v10
    v_bfe_u32 v11, v9, 1, 1
    v_lshl_add_u32 v10, v11, 3, v10
    v_add_u32 v10, {ZA}, v10
    s_mov_b32 exec_lo, 0xffff
    s_mov_b32 exec_hi, 0
    ds_write_b64 v10, v[132:133]
    s_mov_b64 exec, -1
    {noz}:
    s_waitcnt vmcnt(0)
    ''')
    sum8(164)
    k(f'''
    v_cvt_pk_bf16_f32 v164, v164, v165
    v_cvt_pk_bf16_f32 v165, v166, v167
    s_lshr_b32 s46, s{S_WAVE}, 1
    s_lshl_b32 s46, s46, 10
    s_and_b32 s47, s{S_WAVE}, 1
    s_lshl_b32 s47, s47, 3
    s_add_u32 s46, s46, s47
    s_add_u32 s46, s46, {KVA}
    v_add_u32 v9, s46, v3
    ds_write_b64 v9, v[164:165]
    s_waitcnt lgkmcnt(0)
    s_barrier
    v_lshlrev_b32 v10, 4, v6
    v_add_u32 v10, {ZA}, v10
    v_add_u32 v11, {KVA}, v3
    ''')
    ts('ka reduced')
    KA_, ZA_, NUM, DEN = 132, 148, 164, 180
    for i in range(4):
        k(f'ds_read_b128 v[{KA_+4*i}:{KA_+4*i+3}], v11 offset:{i*1024}')
        k(f'ds_read_b128 v[{ZA_+4*i}:{ZA_+4*i+3}], v10 offset:{i*32}')
    k('s_waitcnt lgkmcnt(0)')
    PHQ = [QHP, QHP+4, QHN, QHN+4]
    for i in range(4):
        mfma(k, NUM, KA_+4*i, PHQ[i], 0 if i==0 else None)
        mfma(k, DEN, ZA_+4*i, PHQ[i], 0 if i==0 else None)
    k(f'v_add_f32 v9, 0x358637bd, v{DEN}')
    k('v_rcp_f32 v9, v9')
    for i in range(16): k(f'v_mul_f32 v{NUM+i}, v{NUM+i}, v9')
    OP = 56
    for p in range(8): k(f'v_cvt_pk_bf16_f32 v{OP+p}, v{NUM+2*p}, v{NUM+2*p+1}')
    for g in (0,2):
        k(f'v_permlane32_swap_b32 v{OP+2*g}, v{OP+2*g+2}')
        k(f'v_permlane32_swap_b32 v{OP+2*g+1}, v{OP+2*g+3}')
    k(f'''
    s_mul_i32 s46, s{S_J}, {4*CS8}
    v_add_u32 v9, s46, v2
    ''')
    lstores(k, [f's_mov_b32 s46, {WS_O[layer]}', f's_mov_b32 s47, {WS_O[layer]+2*CS8}',
                f'buffer_store_dwordx4 v[{OP}:{OP+3}], v9, {WS}, s46 offen', f'buffer_store_dwordx4 v[{OP+4}:{OP+7}], v9, {WS}, s47 offen'])
    publish(k, F_KA0+layer, True)
    kb_dma(k,2); kb_dma(k,3)
    ts('ka published')

def phase_kb(k, ts, layer):
    M=f's{S_MASK}'
    vm = Q(k,'vmcnt',63); lg = Q(k,'lgkmcnt',15)
    last = layer==1
    xin = WS_X1 if layer==0 else WS_X3
    k(f'''
    v_and_b32 v1, 63, v0
    v_and_b32 v5, 31, v1
    v_lshrrev_b32 v6, 5, v1
    s_and_b32 s42, s{S_J}, 1
    s_lshl_b32 s43, s{S_G}, 1
    s_add_u32 s42, s42, s43
    s_lshl_b32 s42, s42, 7
    s_lshl_b32 s43, s59, 5
    s_add_u32 s42, s42, s43
    v_add_u32 v7, s42, v5
    v_mul_u32_u24 v8, {CS8}, v6
    v_lshl_add_u32 v8, v7, 4, v8
    s_mul_i32 s42, s60, {64*CS8}
    v_add_u32 v2, s42, v8
    v_lshlrev_b32 v3, 4, v1
    s_lshl_b32 s43, s60, 14
    s_lshl_b32 s44, s60, 10
    s_add_u32 s45, s43, s44
    v_add_u32 v9, s45, v3
    s_sub_u32 s45, s43, s44
    s_add_u32 s45, s45, 1024
    v_add_u32 v10, s45, v3
    v_add_u32 v13, {KB_BASE[0]}, v9
    v_add_u32 v14, {KB_BASE[0]}, v10
    s_lshl_b32 s50, s58, 3
    s_lshl_b32 s51, s60, 2
    s_add_u32 s50, s50, s51
    s_mul_i32 s50, s50, {CS8}
    v_add_u32 v11, s50, v8
    s_mov_b32 s42, {xin}
    s_mov_b32 s43, {xin+2*CS8}
    buffer_load_dwordx4 v[112:115], v11, {WS}, s42 offen sc1
    buffer_load_dwordx4 v[116:119], v11, {WS}, s43 offen sc1
    ''')
    ACA, ACB = 16, 32
    for i in range(32): k(f'v_mov_b32 v{16+i}, 0')
    wait_flags(k, F_KA0+layer, 'group')
    ts('kb waited')
    XB = lambda s: 48+4*(s%16)
    def xload(step):
        k(f's_mov_b32 s49, {WS_O[layer]+step*2*CS8}')
        k(f'buffer_load_dwordx4 v[{XB(step)}:{XB(step)+3}], v2, {WS}, s49 offen sc1')
        vm.issue(('x',step))
    and_base = lambda step: (13,14,(step//8)*32768+(step%8)*2048) if step<16 else (9,10,(step//8-2)*32768+(step%8)*2048)
    WB = lambda st,t: 120+8*st+4*t
    def wread(step):
        st = step&1; a,b,off = and_base(step)
        k(f'ds_read_b128 v[{WB(st,0)}:{WB(st,0)+3}], v{a} offset:{off}'); lg.issue(('w',step))
        k(f'ds_read_b128 v[{WB(st,1)}:{WB(st,1)+3}], v{b} offset:{off}'); lg.issue(('w',step))
    for s in range(16): xload(s)
    wread(0)
    for step in range(32):
        if step+1 < 32: wread(step+1)
        lg.wait(('w',step))
        vm.wait(('x',step))
        st = step&1; X = XB(step)
        mfma(k, ACA, WB(st,0), X)
        mfma(k, ACB, WB(st,1), X)
        if step+16 < 32: xload(step+16)
    ts('kb main')
    k('s_barrier')
    k(f's_lshl_b32 s53, s{S_WAVE}, 12')
    k('v_add_u32 v12, s53, v3')
    for g in range(4): k(f'ds_write_b128 v12, v[{ACB+4*g}:{ACB+4*g+3}] offset:{g*1024}')
    k(f'''
    s_xor_b32 s53, s{S_WAVE}, 4
    s_lshl_b32 s53, s53, 12
    v_add_u32 v12, s53, v3
    s_waitcnt lgkmcnt(0)
    s_barrier
    ''')
    for g in range(4): k(f'ds_read_b128 v[{ACB+4*g}:{ACB+4*g+3}], v12 offset:{g*1024}')
    k('s_waitcnt lgkmcnt(0)')
    for i in range(16): k(f'v_add_f32 v{ACA+i}, v{ACA+i}, v{ACB+i}')
    OP = 48
    for p in range(8): k(f'v_cvt_pk_bf16_f32 v{OP+p}, v{ACA+2*p}, v{ACA+2*p+1}')
    for g in (0,2):
        k(f'v_permlane32_swap_b32 v{OP+2*g}, v{OP+2*g+2}')
        k(f'v_permlane32_swap_b32 v{OP+2*g+1}, v{OP+2*g+3}')
    for i in range(8):
        k(f'v_lshlrev_b32 v{56+2*i}, 16, v{OP+i}')
        k(f'v_and_b32 v{57+2*i}, {M}, v{OP+i}')
        k(f'v_lshlrev_b32 v{72+2*i}, 16, v{112+i}')
        k(f'v_and_b32 v{73+2*i}, {M}, v{112+i}')
    for i in range(16): k(f'v_add_f32 v{56+i}, v{56+i}, v{72+i}')
    for i in range(8): k(f'v_cvt_pk_bf16_f32 v{OP+i}, v{56+2*i}, v{57+2*i}')
    if not last:
        lstores(k, [f's_mov_b32 s42, {WS_X2}', f's_mov_b32 s43, {WS_X2+2*CS8}',
                    f'buffer_store_dwordx4 v[{OP}:{OP+3}], v11, {WS}, s42 offen', f'buffer_store_dwordx4 v[{OP+4}:{OP+7}], v11, {WS}, s43 offen'])
        publish(k, F_KB0, True)
        ts('kb published')
    else:
        k(f'''
        s_load_dwordx2 s[{S_A}:{S_A+1}], s[0:1], {ARG['out']}
        s_mov_b32 s{S_A+2}, {4*MB}
        s_lshl_b32 s50, s58, 7
        s_lshl_b32 s51, s60, 6
        s_add_u32 s50, s50, s51
        v_lshlrev_b32 v12, 11, v7
        v_lshl_add_u32 v12, v6, 4, v12
        v_add_u32 v12, s50, v12
        s_waitcnt lgkmcnt(0)
        buffer_store_dwordx4 v[{OP}:{OP+3}], v12, s[{S_A}:{S_A+3}], 0 offen
        buffer_store_dwordx4 v[{OP+4}:{OP+7}], v12, s[{S_A}:{S_A+3}], 0 offen offset:32
        ''')

def gen(name, upto=99):
    k = Kern()
    k(f'.globl {name}\n.p2align 8\n.type {name},@function\n{name}:')
    k(f's_cmp_ge_u32 s2, 256\ns_cbranch_scc1 {name}_end')
    ts = Stamper(k)
    phases = [phase_init_p0, phase_conv,
              lambda k,ts: phase_e(k,ts,0), lambda k,ts: phase_ka(k,ts,0), lambda k,ts: phase_kb(k,ts,0),
              lambda k,ts: phase_e(k,ts,1), lambda k,ts: phase_ka(k,ts,1), lambda k,ts: phase_kb(k,ts,1)]
    for i,p in enumerate(phases):
        if i>=upto: break
        p(k,ts)
    k('s_waitcnt vmcnt(0) lgkmcnt(0)')
    ts.flush()
    k(f'{name}_end:\ns_endpgm')
    return k.finish()

def build(path, upto=99):
    name = NAME+'_kernel'
    head = open('cdna_kernels/'+NAME+'.s.ref').read().split('\n')
    lines=[l for l in head if l.startswith('; Kernarg') or l.startswith(';   offset')]
    lines.append(f'; @launch grid=(256,1,1) block=(512,1,1) lds={LDS_TOTAL}')
    lines.append('.amdgcn_target "amdgcn-amd-amdhsa--gfx950"\n.text')
    lines.append(gen(name, upto))
    lines.append(f'''.section .rodata,"a"
.p2align 6
.amdhsa_kernel {name}
  .amdhsa_next_free_vgpr 256
  .amdhsa_next_free_sgpr 102
  .amdhsa_accum_offset 256
  .amdhsa_group_segment_fixed_size 0
  .amdhsa_kernarg_size 104
  .amdhsa_user_sgpr_count 2
  .amdhsa_user_sgpr_kernarg_segment_ptr 1
  .amdhsa_system_sgpr_workgroup_id_x 1
.end_amdhsa_kernel''')
    open(path,'w').write('\n'.join(lines)+'\n')

if __name__=='__main__':
    upto = int(sys.argv[2]) if len(sys.argv)>2 else 99
    if len(sys.argv)>3 and sys.argv[3]=='stamp': mcommon.STAMPS=True
    build(sys.argv[1], upto)
```

```python
from asmlib import Kern
from track import Q
MB = 1<<20
ARG = dict(q=0,k=8,v=16,shift=24,ssmk=32,ssmd=40,x=48,wqkv=56,wphi=64,wo=72,out=80,dbg=88,ws=96)
UTS=4096+128; CS4=16384+128; CS8=32768+128
SZ_UT=1024*UTS; SZ_Y=256*CS4; SZ_X=128*CS8
WS_UT=0; WS_Y=5*MB; WS_WQ=10*MB; WS_WO=16*MB; WS_X1=18*MB; WS_X2=23*MB; WS_X3=WS_X1
WS_XN=[33*MB,33*MB]; WS_O=[43*MB,43*MB]
WS_PART=53*MB; PART_STRIDE=8448; PART_LAYER=32*8*PART_STRIDE
WS_FLAG=58*MB; WS_TS=60*MB; WS_SIZE=64*MB
F_P0,F_CONV,F_E0,F_E1,F_KA0,F_KA1,F_KB0,F_HELLO = range(8)
F_KV=16384
WS_NONCE=58*MB+32768
S_N0=6; S_N1=7
NAME='interleave_layers__ssm_conv_h3__linear_kernel_hedgehog__prompt'
SPIN_MAX=100000
LDS_TOTAL=163840
S_WS=8
S_A=12; S_B=16; S_C=20; S_D=28
S_DBG=24
S_WAVE=33; S_G=34; S_J=35; S_PURE=36; S_MASK=39; S_L2E=40; S_NL2E=41
STAMPS=False

def srd(k, s, lo, hi, size, off=0):
    if off:
        k(f's_add_u32 s{s}, s{lo}, {off}')
        k(f's_addc_u32 s{s+1}, s{hi}, 0')
    else:
        k(f's_mov_b32 s{s}, s{lo}')
        k(f's_mov_b32 s{s+1}, s{hi}')
    k(f's_mov_b32 s{s+2}, {size}')
    k(f's_mov_b32 s{s+3}, 0x20000')

def load_srd(k, s, arg, size):
    k(f's_load_dwordx2 s[{s}:{s+1}], s[0:1], {ARG[arg]}')
    k(f's_mov_b32 s{s+2}, {size}')
    k(f's_mov_b32 s{s+3}, 0x20000')

_uid=[0]
def uid(p):
    _uid[0]+=1
    return f'L{p}{_uid[0]}'

def lstores(k, lines):
    a,b=uid('st'),uid('sd')
    k(f's_cmp_eq_u32 s{S_PURE}, 0')
    k(f's_cbranch_scc1 {a}')
    for l in lines: k(l)
    k(f's_branch {b}')
    k(f'{a}:')
    for l in lines:
        if l.startswith('buffer_store'): k(l+' sc1')
        else: k(l)
    k(f'{b}:')

def flag_addr(k, arr, dst):
    if arr>=F_KV:
        k(f's_lshl_b32 {dst}, s{S_J}, 7')
        k(f's_lshl_b32 s43, s{S_G}, 3')
        off=WS_FLAG+arr
    else:
        k(f's_lshl_b32 {dst}, s{S_G}, 8')
        k(f's_lshl_b32 s43, s{S_J}, 3')
        off=WS_FLAG+arr*2048
    k(f's_add_u32 {dst}, {dst}, s43')
    k(f's_add_u32 {dst}, {dst}, {off}')

def set_flag(k, arr, local, vt=230, lo=None):
    skip=uid('pb')
    k(f's_cmp_lg_u32 s{S_WAVE}, 0')
    k(f's_cbranch_scc1 {skip}')
    flag_addr(k, arr, 's42')
    k(f'v_mov_b32 v{vt}, s42')
    k(f'v_mov_b32 v{vt+2}, {lo or f"s{S_N0}"}')
    k(f'v_mov_b32 v{vt+3}, s{S_N1}')
    k('s_mov_b64 exec, 1')
    st=f'buffer_store_dwordx2 v[{vt+2}:{vt+3}], v{vt}, s[{S_WS}:{S_WS+3}], 0 offen'
    if local: lstores(k, [st])
    else: k(st+' sc1')
    k('s_mov_b64 exec, -1')
    k(f'{skip}:')

def publish(k, arr, local, vt=230):
    k('s_waitcnt vmcnt(0)')
    k('s_barrier')
    set_flag(k, arr, local, vt)

def poll(k, arr, kind, vt=200):
    done,pl=uid('wf'),uid('pl')
    k(f'v_and_b32 v{vt}, 63, v0')
    if kind=='group':
        k(f'v_and_b32 v{vt}, 31, v{vt}')
        k(f'v_lshlrev_b32 v{vt}, 3, v{vt}')
        k(f's_lshl_b32 s42, s{S_G}, 8')
        k(f's_add_u32 s42, s42, {WS_FLAG+arr*2048}')
    elif kind=='all':
        k(f'v_lshlrev_b32 v{vt}, 5, v{vt}')
        k(f's_mov_b32 s42, {WS_FLAG+arr*2048}')
    else:
        k(f'v_and_b32 v{vt}, 7, v{vt}')
        k(f'v_lshlrev_b32 v{vt}, 3, v{vt}')
        k(f's_lshl_b32 s42, s{S_J}, 7')
        k(f's_add_u32 s42, s42, {WS_FLAG+arr}')
    k(f'v_add_u32 v{vt}, s42, v{vt}')
    k('s_mov_b32 s43, 0')
    k(f'{pl}:')
    if kind=='all':
        k(f'buffer_load_dwordx4 v[{vt+2}:{vt+5}], v{vt}, s[{S_WS}:{S_WS+3}], 0 offen sc1')
        k(f'buffer_load_dwordx4 v[{vt+6}:{vt+9}], v{vt}, s[{S_WS}:{S_WS+3}], 0 offen offset:16 sc1')
    else:
        k(f'buffer_load_dwordx2 v[{vt+2}:{vt+3}], v{vt}, s[{S_WS}:{S_WS+3}], 0 offen sc1')
    k('s_add_u32 s43, s43, 1')
    k(f's_cmp_gt_u32 s43, {SPIN_MAX}')
    k(f's_cbranch_scc1 {done}')
    k('s_waitcnt vmcnt(0)')
    if kind=='all':
        for i in range(4):
            k(f'v_xor_b32 v{vt+2+2*i}, s{S_N0}, v{vt+2+2*i}')
            k(f'v_xor_b32 v{vt+3+2*i}, s{S_N1}, v{vt+3+2*i}')
        k(f'v_or3_b32 v{vt+2}, v{vt+2}, v{vt+3}, v{vt+4}')
        k(f'v_or3_b32 v{vt+5}, v{vt+5}, v{vt+6}, v{vt+7}')
        k(f'v_or3_b32 v{vt+8}, v{vt+8}, v{vt+9}, v{vt+2}')
        k(f'v_or_b32 v{vt+1}, v{vt+5}, v{vt+8}')
    else:
        k(f'v_and_b32 v{vt+1}, -16, v{vt+2}')
        k(f'v_xor_b32 v{vt+1}, s{S_N0}, v{vt+1}')
        k(f'v_xor_b32 v{vt+4}, s{S_N1}, v{vt+3}')
        k(f'v_or_b32 v{vt+1}, v{vt+1}, v{vt+4}')
    k(f'v_cmp_ne_u32 vcc, 0, v{vt+1}')
    k(f's_cbranch_vccnz {pl}')
    k(f'{done}:')
    k('s_waitcnt vmcnt(0)')

def wait_flags(k, arr, kind, pre=None, vt=200):
    other,join=uid('wo'),uid('wj')
    k(f's_cmp_lg_u32 s{S_WAVE}, 0')
    k(f's_cbranch_scc1 {other}')
    poll(k, arr, kind, vt)
    if pre:
        pre(); k(f's_branch {join}'); k(f'{other}:'); pre(); k(f'{join}:')
    else:
        k(f'{other}:')
    k('s_barrier')

class Stamper:
    def __init__(self, k):
        self.k=k; self.n=0; self.names=[]
    def __call__(self, nm):
        import mcommon, os
        if not mcommon.STAMPS: return
        if nm in ('ka kside','ka qside','ka reduced','p0 stored','conv start','join','e pre') and (nm in self.names or os.environ.get('FEW')): return
        i=self.n; self.n+=1; self.names.append(nm)
        assert i<32
        import os
        self.k('s_memtime s[96:97]' if os.environ.get('CYC') else 's_memrealtime s[96:97]')
        self.k('s_waitcnt lgkmcnt(0)')
        self.k(f's_mov_b32 s{64+i}, s96')
    def flush(self):
        import mcommon
        if not mcommon.STAMPS: return
        self('end')
        k=self.k
        k(f's_lshl_b32 s42, s2, 3')
        k(f's_add_u32 s42, s42, s{S_WAVE}')
        k(f's_lshl_b32 s42, s42, 7')
        k(f's_add_u32 s42, s42, {WS_TS}')
        k('v_mov_b32 v1, s42')
        k('s_mov_b64 exec, 1')
        for i in range(self.n):
            k(f'v_mov_b32 v2, s{64+i}')
            k(f'buffer_store_dword v2, v1, s[{S_WS}:{S_WS+3}], 0 offen offset:{4*i}')
        k('s_waitcnt vmcnt(0)')
        open('stamp_names.txt','w').write(repr(self.names))
```

```python
import sys
sys.path.insert(0,'gen')
import mcommon
from mcommon import *
from ka import softmax_pair as _sp_unused
WS=f's[{S_WS}:{S_WS+3}]'
import os
EXP=os.environ.get('EXP','')

def touch(k, first_wave, specs):
    for i,f in enumerate(specs):
        z=uid('tc')
        k(f's_cmp_lg_u32 s{S_WAVE}, {first_wave+i}')
        k(f's_cbranch_scc1 {z}')
        k('v_and_b32 v239, 63, v0')
        f()
        k(f'buffer_load_dword v239, v238, {WS}, 0 offen sc1')
        k(f'{z}:')
def t_rows8(k, base, half):
    def f():
        k(f's_lshl_b32 s42, s{S_G}, 12')
        k(f's_lshl_b32 s43, s{S_J}, 7')
        k('s_add_u32 s42, s42, s43')
        k(f's_add_u32 s42, s42, {base+half*64*CS8}')
        k(f'v_mul_u32_u24 v238, {CS8}, v239')
        k('v_add_u32 v238, s42, v238')
    return f
def t_o(k, base, half):
    def f():
        k(f's_mul_i32 s42, s{S_J}, {4*CS8}')
        k(f's_lshl_b32 s43, s{S_G}, 12')
        k('s_add_u32 s42, s42, s43')
        k(f's_add_u32 s42, s42, {base+half*2*CS8}')
        k('v_lshrrev_b32 v238, 5, v239')
        k(f'v_mul_u32_u24 v238, {CS8}, v238')
        k('v_and_b32 v239, 31, v239')
        k('v_lshl_add_u32 v238, v239, 7, v238')
        k('v_add_u32 v238, s42, v238')
    return f
def t_x2(k, base, half):
    def f():
        k(f's_lshr_b32 s42, s{S_J}, 1')
        k(f's_mul_i32 s42, s42, {8*CS8}')
        k(f's_and_b32 s43, s{S_J}, 1')
        k('s_lshl_b32 s43, s43, 11')
        k('s_add_u32 s42, s42, s43')
        k(f's_lshl_b32 s43, s{S_G}, 12')
        k('s_add_u32 s42, s42, s43')
        k(f's_add_u32 s42, s42, {base+half*4*CS8}')
        k('v_lshrrev_b32 v238, 4, v239')
        k(f'v_mul_u32_u24 v238, {CS8}, v238')
        k('v_and_b32 v239, 15, v239')
        k('v_lshl_add_u32 v238, v239, 7, v238')
        k('v_add_u32 v238, s42, v238')
    return f
def t_ut(k, half):
    def f():
        k(f's_lshl_b32 s42, s{S_G}, 7')
        k(f's_add_u32 s42, s42, {64*half}')
        k(f's_mul_i32 s42, s42, {UTS}')
        k(f's_lshl_b32 s43, s{S_J}, 7')
        k('s_add_u32 s42, s42, s43')
        k(f's_add_u32 s42, s42, {WS_UT}')
        k(f'v_mul_u32_u24 v238, {UTS}, v239')
        k('v_add_u32 v238, s42, v238')
    return f

KT=84992; VT=KT+17408; US=VT+16384
def phase_init_p0(k, ts):
    k(f"""
    s_load_dwordx2 s[4:5], s[0:1], {ARG['ws']}
    s_load_dwordx2 s[{S_A}:{S_A+1}], s[0:1], {ARG['k']}
    s_load_dwordx2 s[{S_B}:{S_B+1}], s[0:1], {ARG['v']}
    s_load_dwordx2 s[{S_C}:{S_C+1}], s[0:1], {ARG['shift']}
    s_load_dwordx2 s[{S_D}:{S_D+1}], s[0:1], {ARG['ssmk']}
    s_getreg_b32 s37, hwreg(HW_REG_XCC_ID, 0, 4)
    v_and_b32 v1, 63, v0
    v_lshrrev_b32 v2, 6, v0
    s_and_b32 s{S_G}, s2, 7
    s_lshr_b32 s{S_J}, s2, 3
    v_readfirstlane_b32 s{S_WAVE}, v2
    s_mov_b32 s{S_MASK}, 0xffff0000
    s_mov_b32 s{S_L2E}, 0x3fb8aa3b
    s_mov_b32 s{S_NL2E}, 0xbfb8aa3b
    s_mov_b32 s{S_A+2}, {4*MB}
    s_mov_b32 s{S_A+3}, 0x20000
    s_mov_b32 s{S_B+2}, {4*MB}
    s_mov_b32 s{S_B+3}, 0x20000
    s_mov_b32 s{S_C+2}, 8192
    s_mov_b32 s{S_C+3}, 0x20000
    s_mov_b32 s{S_D+2}, {4*MB}
    s_mov_b32 s{S_D+3}, 0x20000
    """)
    k(f"""
    v_lshrrev_b32 v3, 4, v1
    v_and_b32 v4, 15, v1
    s_lshl_b32 s48, s{S_J}, 6
    s_lshl_b32 s49, s{S_WAVE}, 2
    s_add_u32 s48, s48, s49
    v_add_u32 v5, s48, v3
    v_lshlrev_b32 v5, 11, v5
    s_lshl_b32 s49, s{S_G}, 8
    v_lshl_add_u32 v6, v4, 4, s49
    v_add_u32 v5, v5, v6
    v_subrev_u32 v6, {3*2048}, v5
    v_add_u32 v7, {32*2048}, v6
    v_add_u32 v8, {64*2048}, v6
    s_lshl_b32 s50, s{S_WAVE}, 10
    s_waitcnt lgkmcnt(0)
    """)
    srd(k, S_WS, 4, 5, WS_SIZE)
    ts('start')
    k(f's_add_u32 s42, s4, {WS_NONCE}')
    k('s_addc_u32 s43, s5, 0')
    k(f's_load_dwordx2 s[{S_N0}:{S_N1}], s[42:43], 0')
    z=uid('k17')
    k(f"""
    s_add_u32 m0, s50, {KT}
    s_mov_b32 s51, {32*2048}
    buffer_load_dwordx4 v6, s[{S_A}:{S_A+3}], 0 offen lds
    s_add_u32 m0, s50, {VT}
    s_nop 0
    buffer_load_dwordx4 v5, s[{S_B}:{S_B+3}], 0 offen lds
    s_add_u32 m0, s50, {KT+8192}
    s_nop 0
    buffer_load_dwordx4 v7, s[{S_A}:{S_A+3}], 0 offen lds
    s_add_u32 m0, s50, {VT+8192}
    s_nop 0
    buffer_load_dwordx4 v5, s[{S_B}:{S_B+3}], s51 offen lds
    s_cmp_lg_u32 s{S_WAVE}, 0
    s_cbranch_scc1 {z}
    s_mov_b32 m0, {KT+16384}
    s_nop 0
    buffer_load_dwordx4 v8, s[{S_A}:{S_A+3}], 0 offen lds
    {z}:
    """)
    k(f"""
    v_and_b32 v55, 31, v1
    v_lshrrev_b32 v56, 5, v1
    s_lshl_b32 s49, s{S_G}, 10
    v_lshl_add_u32 v9, v55, 5, s49
    buffer_load_dwordx4 v[42:45], v9, s[{S_C}:{S_C+3}], 0 offen
    buffer_load_dwordx4 v[46:49], v9, s[{S_C}:{S_C+3}], 0 offen offset:16
    """)
    k(f"""
    s_and_b32 s51, s{S_WAVE}, 3
    s_lshr_b32 s52, s{S_WAVE}, 2
    s_lshl_b32 s53, s{S_G}, 7
    s_lshl_b32 s54, s{S_J}, 2
    s_add_u32 s53, s53, s54
    s_add_u32 s53, s53, s51
    s_lshl_b32 s54, s53, 12
    s_lshl_b32 s55, s52, 11
    s_add_u32 s55, s55, s54
    v_lshlrev_b32 v50, 5, v1
    v_add_u32 v51, s55, v50
    v_subrev_u32 v52, 8, v51
    v_or_b32 v53, s52, v1
    v_cmp_eq_u32 vcc, 0, v53
    v_mov_b32 v54, 0x7ffffff0
    v_cndmask_b32 v52, v52, v54, vcc
    buffer_load_dwordx2 v[220:221], v52, s[{S_D}:{S_D+3}], 0 offen
    buffer_load_dwordx4 v[222:225], v51, s[{S_D}:{S_D+3}], 0 offen
    buffer_load_dwordx4 v[226:229], v51, s[{S_D}:{S_D+3}], 0 offen offset:16
    """)
    touch(k, 2, [t_ut(k,0), t_ut(k,1)])
    k('s_waitcnt lgkmcnt(0)')
    k(f's_add_u32 s{S_N0}, s{S_N0}, 16')
    k(f's_and_b32 s{S_N0}, s{S_N0}, -16')
    k(f's_add_u32 s{S_N1}, s{S_N1}, 1')
    k(f's_or_b32 s45, s{S_N0}, s37')
    set_flag(k, F_HELLO, False, lo='s45')
    k('v_lshlrev_b32 v58, 2, v56')
    k('v_sub_u32 v58, v55, v58')
    k('v_mov_b32 v60, 0x3f80')
    k('v_mov_b32 v61, 0x3f800000')
    for i in range(2):
        for p in range(4):
            c0 = 16*i + 8*(p>>1) + 2*(p&1)
            r = 248+4*i+p
            k(f'v_cmp_eq_u32 vcc, {c0}, v58')
            k(f'v_cmp_eq_u32 s[42:43], {c0+1}, v58')
            k(f'v_cndmask_b32 v{r}, 0, v60, vcc')
            k(f'v_cndmask_b32 v59, 0, v61, s[42:43]')
            k(f'v_or_b32 v{r}, v{r}, v59')
    k(f"""
    s_lshl_b32 s48, s{S_WAVE}, 11
    v_lshlrev_b32 v10, 10, v56
    v_lshl_add_u32 v10, v55, 3, v10
    v_add_u32 v10, s48, v10
    v_add_u32 v11, {VT}, v10
    v_add_u32 v10, {KT}, v10
    s_waitcnt vmcnt(3)
    s_barrier
    """)
    ts('p0 loaded')
    k(f"""
    v_and_b32 v230, 31, v1
    v_lshlrev_b32 v230, 3, v230
    s_lshl_b32 s42, s{S_G}, 8
    s_add_u32 s42, s42, {WS_FLAG+F_HELLO*2048}
    v_add_u32 v230, s42, v230
    buffer_load_dwordx2 v[232:233], v230, {WS}, 0 offen sc1
    """)
    for i in range(7): k(f'ds_read_b64 v[{20+2*i}:{21+2*i}], v10 offset:{256*i}')
    for jj in range(4): k(f'ds_read_b64 v[{34+2*jj}:{35+2*jj}], v11 offset:{256*jj}')
    M=f's{S_MASK}'
    W = lambda c,t: 60+4*c+t
    for c in range(4):
        for h in range(2):
            src = 42+2*c+h
            k(f'v_lshlrev_b32 v{W(c,2*h)}, 16, v{src}')
            k(f'v_and_b32 v{W(c,2*h+1)}, {M}, v{src}')
    k('s_waitcnt lgkmcnt(0)')
    K = lambda i,c: 76+4*i+c
    V = lambda j,c: 104+4*j+c
    for i in range(7):
        for h in range(2):
            k(f'v_lshlrev_b32 v{K(i,2*h)}, 16, v{20+2*i+h}')
            k(f'v_and_b32 v{K(i,2*h+1)}, {M}, v{20+2*i+h}')
    for j in range(4):
        for h in range(2):
            k(f'v_lshlrev_b32 v{V(j,2*h)}, 16, v{34+2*j+h}')
            k(f'v_and_b32 v{V(j,2*h+1)}, {M}, v{34+2*j+h}')
    A = lambda j,c: 120+4*j+c
    P = lambda j,c: 136+4*j+c
    T = lambda j,h: 152+2*j+h
    def rnd(R):
        for j in range(4):
            for h in range(2):
                k(f'v_cvt_pk_bf16_f32 v{T(j,h)}, v{R(j,2*h)}, v{R(j,2*h+1)}')
        for j in range(4):
            for h in range(2):
                k(f'v_lshlrev_b32 v{R(j,2*h)}, 16, v{T(j,h)}')
                k(f'v_and_b32 v{R(j,2*h+1)}, {M}, v{T(j,h)}')
    for j in range(4):
        for c in range(4): k(f'v_mul_f32 v{A(j,c)}, v{K(j,c)}, v{W(c,3)}')
    rnd(A)
    for t in range(1,4):
        for j in range(4):
            for c in range(4): k(f'v_mul_f32 v{P(j,c)}, v{K(j+t,c)}, v{W(c,3-t)}')
        rnd(P)
        for j in range(4):
            for c in range(4): k(f'v_add_f32 v{A(j,c)}, v{A(j,c)}, v{P(j,c)}')
        rnd(A)
    for j in range(4):
        for c in range(4): k(f'v_mul_f32 v{A(j,c)}, v{A(j,c)}, v{V(j,c)}')
    for c in range(4):
        k(f'v_cvt_pk_bf16_f32 v{20+2*c}, v{A(0,c)}, v{A(1,c)}')
        k(f'v_cvt_pk_bf16_f32 v{21+2*c}, v{A(2,c)}, v{A(3,c)}')
    k(f"""
    v_and_b32 v12, 7, v55
    v_xor_b32 v12, s{S_WAVE}, v12
    v_lshlrev_b32 v12, 4, v12
    v_lshl_add_u32 v12, v56, 3, v12
    v_lshl_add_u32 v12, v55, 9, v12
    v_add_u32 v12, {US}, v12
    """)
    for c in range(4): k(f'ds_write_b64 v12, v[{20+2*c}:{21+2*c}] offset:{128*c}')
    ok=uid('hok')
    k(f"""
    s_waitcnt vmcnt(0)
    v_and_b32 v231, -16, v232
    v_xor_b32 v231, s{S_N0}, v231
    v_xor_b32 v234, s{S_N1}, v233
    v_or_b32 v231, v231, v234
    v_cmp_ne_u32 vcc, 0, v231
    s_cbranch_vccz {ok}
    """)
    poll(k, F_HELLO, 'group', vt=230)
    k(f"""
    {ok}:
    v_and_b32 v232, 15, v232
    v_cmp_ne_u32 vcc, s37, v232
    s_cmp_eq_u64 vcc, 0
    s_cselect_b32 s{S_PURE}, 1, 0
    v_and_b32 v13, 7, v0
    v_lshrrev_b32 v14, 3, v0
    v_bfe_u32 v15, v14, 2, 3
    v_xor_b32 v15, v15, v13
    v_lshlrev_b32 v15, 4, v15
    v_lshl_add_u32 v15, v14, 7, v15
    v_add_u32 v15, {US}, v15
    s_lshl_b32 s42, s{S_G}, 7
    v_add_u32 v16, s42, v14
    v_mul_u32_u24 v16, {UTS}, v16
    v_lshl_add_u32 v16, v13, 4, v16
    s_lshl_b32 s43, s{S_J}, 7
    v_add_u32 v16, s43, v16
    s_waitcnt lgkmcnt(0)
    s_barrier
    ds_read_b128 v[20:23], v15
    ds_read_b128 v[24:27], v15 offset:8192
    s_waitcnt lgkmcnt(0)
    """)
    lstores(k, [f's_mov_b32 s42, {WS_UT}', f's_mov_b32 s43, {WS_UT+64*UTS}',
                f'buffer_store_dwordx4 v[20:23], v16, {WS}, s42 offen', f'buffer_store_dwordx4 v[24:27], v16, {WS}, s43 offen'])
    ts('p0 stored')

ACH=16640; ACP=4160; UB=4*ACH; UCH=4608; PREP_LDS=UB+4*UCH
def phase_conv(k, ts):
    k(f'''
    s_mul_i32 s45, s51, {ACH}
    v_mov_b32 v20, 0
    v_mov_b32 v21, 0
    v_lshrrev_b32 v22, 4, v1
    v_mul_u32_u24 v22, {ACP}, v22
    v_and_b32 v23, 15, v1
    v_lshl_add_u32 v22, v23, 2, v22
    v_add_u32 v22, s45, v22
    ds_write_b32 v22, v20
    s_mul_i32 s46, s51, {UCH}
    s_add_u32 s46, s46, {UB}
    s_lshl_b32 s47, s52, 8
    s_add_u32 s47, s47, s46
    v_lshl_add_u32 v22, v1, 2, s47
    ds_write_b32 v22, v20
    s_lshl_b32 s47, s52, 11
    s_add_u32 s47, s47, s45
    s_add_u32 s47, s47, 64
    v_lshlrev_b32 v24, 5, v1
    v_add_u32 v24, s47, v24
    ''')
    F=26; G=34; H=44; T0=220
    for i in range(8): k(f'v_mov_b32 v{F+i}, v{T0+1+i}')
    for i in range(9): k(f'v_alignbit_b32 v{G+i}, v{T0+1+i}, v{T0+i}, 16')
    for i in range(8): k(f'v_alignbit_b32 v{H+i}, v{T0+2+i}, v{T0+1+i}, 16')
    k(f'''
    ds_write_b128 v24, v[{T0+2}:{T0+5}]
    ds_write_b128 v24, v[{T0+6}:{T0+9}] offset:16
    ds_write_b128 v24, v[{H}:{H+3}] offset:{ACP}
    ds_write_b128 v24, v[{H+4}:{H+7}] offset:{ACP+16}
    ds_write_b128 v24, v[{F}:{F+3}] offset:{2*ACP}
    ds_write_b128 v24, v[{F+4}:{F+7}] offset:{2*ACP+16}
    ds_write_b128 v24, v[{G}:{G+3}] offset:{3*ACP}
    ds_write_b128 v24, v[{G+4}:{G+7}] offset:{3*ACP+16}
    ''')
    k(f'''
    s_load_dwordx2 s[42:43], s[0:1], {ARG['ssmd']}
    s_lshr_b32 s44, s53, 1
    s_lshl_b32 s44, s44, 2
    s_waitcnt lgkmcnt(0)
    s_load_dword s38, s[42:43], s44
    ''')
    publish(k, F_P0, True)
    ts('p0 published')
    prep,join,nw=uid('prep'),uid('join'),uid('nw')
    wo,wl=uid('wo'),uid('wl')
    k(f"""
    s_cmp_lt_u32 s{S_WAVE}, 4
    s_cbranch_scc1 {nw}
    s_load_dwordx2 s[{S_A}:{S_A+1}], s[0:1], {ARG['wqkv']}
    s_load_dwordx2 s[{S_B}:{S_B+1}], s[0:1], {ARG['wo']}
    s_mov_b32 s{S_A+2}, {6*MB}
    s_mov_b32 s{S_B+2}, {2*MB}
    s_lshl_b32 s54, s{S_G}, 5
    s_add_u32 s54, s54, s{S_J}
    s_lshl_b32 s54, s54, 2
    s_add_u32 s54, s54, s51
    s_waitcnt lgkmcnt(0)
    s_cmp_ge_u32 s54, 768
    s_cbranch_scc1 {wo}
    s_mul_i32 s55, s54, 43691
    s_lshr_b32 s55, s55, 18
    s_mul_i32 s56, s55, 6
    s_sub_u32 s56, s54, s56
    s_mul_i32 s57, s55, {8*6144}
    s_lshl_b32 s58, s56, 10
    s_add_u32 s57, s57, s58
    v_lshl_add_u32 v3, v1, 4, s57
    """)
    for jj in range(8):
        k(f's_mov_b32 s59, {jj*6144}')
        k(f'buffer_load_dwordx4 v[{168+4*jj}:{171+4*jj}], v3, s[{S_A}:{S_A+3}], s59 offen')
    k(f"""
    s_branch {nw}
    {wo}:
    s_sub_u32 s57, s54, 768
    s_lshr_b32 s55, s57, 1
    s_and_b32 s56, s57, 1
    s_mul_i32 s57, s55, {8*2048}
    s_lshl_b32 s58, s56, 10
    s_add_u32 s57, s57, s58
    v_lshl_add_u32 v3, v1, 4, s57
    """)
    for jj in range(8):
        k(f's_mov_b32 s59, {jj*2048}')
        k(f'buffer_load_dwordx4 v[{168+4*jj}:{171+4*jj}], v3, s[{S_B}:{S_B+3}], s59 offen')
    k(f'{nw}:')
    wait_flags(k, F_P0, 'group')
    ts('p0 waited')
    nu=uid('nu')
    k(f"""
    s_load_dwordx2 s[{S_C}:{S_C+1}], s[0:1], {ARG['q']}
    s_mov_b32 s{S_C+2}, {4*MB}
    v_and_b32 v10, 7, v0
    v_lshrrev_b32 v11, 3, v0
    s_lshl_b32 s42, s{S_G}, 8
    s_lshl_b32 s43, s{S_J}, 3
    s_add_u32 s42, s42, s43
    v_add_u32 v10, s42, v10
    v_lshlrev_b32 v10, 11, v10
    v_lshl_add_u32 v10, v11, 4, v10
    s_cmp_ge_u32 s{S_WAVE}, 4
    s_cbranch_scc1 {nu}
    s_mul_i32 s44, s53, {UTS}
    s_add_u32 s44, s44, {WS_UT}
    v_lshl_add_u32 v8, v1, 4, s44
    s_add_u32 m0, s46, 512
    s_nop 0
    buffer_load_dwordx4 v8, {WS}, 0 offen lds
    buffer_load_dwordx4 v8, {WS}, 0 offen offset:1024 lds
    buffer_load_dwordx4 v8, {WS}, 0 offen offset:2048 lds
    buffer_load_dwordx4 v8, {WS}, 0 offen offset:3072 lds
    s_waitcnt vmcnt(0)
    {nu}:
    s_waitcnt lgkmcnt(0)
    s_barrier
    buffer_load_dwordx4 v[160:163], v10, s[{S_C}:{S_C+3}], 0 offen
    buffer_load_dwordx4 v[164:167], v10, s[{S_C}:{S_C+3}], 0 offen offset:1024
    """)
    touch(k, 0, [t_rows8(k,WS_X1,0), t_rows8(k,WS_X1,1), t_rows8(k,WS_XN[0],0), t_rows8(k,WS_XN[0],1)])
    k(f"""
    s_cmp_ge_u32 s{S_WAVE}, 4
    s_cbranch_scc1 {prep}
    """)
    ts('conv start')
    k(f'''
    v_lshrrev_b32 v3, 4, v1
    v_bfe_u32 v6, v1, 2, 2
    v_and_b32 v7, 3, v1
    v_mul_u32_u24 v8, {ACP}, v6
    v_lshlrev_b32 v9, 4, v3
    v_sub_u32 v8, v8, v9
    v_lshl_add_u32 v8, v7, 3, v8
    s_add_u32 s47, s45, 88
    v_add_u32 v2, s47, v8
    v_and_b32 v4, 15, v1
    v_lshlrev_b32 v8, 5, v4
    v_lshl_add_u32 v8, v3, 4, v8
    s_add_u32 s47, s46, 32
    v_add_u32 v5, s47, v8
    ''')
    VA, VB = 2, 5
    ACC = lambda J: 8+4*J
    BF = lambda st,mu: 40+32*st+4*mu
    AF = lambda n: 104+4*(n%3)
    for i in range(32): k(f'v_mov_b32 v{8+i}, 0')
    lg = Q(k,'lgkmcnt',15)
    def rdB(rho, mu):
        m = 8*mu - rho
        r = BF(rho&1, mu)
        k(f'ds_read_b128 v[{r}:{r+3}], v{VB} offset:{64*(m+7)}'); lg.issue(('B',rho,mu))
    def rdA(n):
        rho,i = n//8, n%8
        kap = 8*i+rho; r = AF(n)
        k(f'ds_read_b64_tr_b16 v[{r}:{r+1}], v{VA} offset:{64*kap+8}'); lg.issue(('A',n))
        k(f'ds_read_b64_tr_b16 v[{r+2}:{r+3}], v{VA} offset:{64*kap}'); lg.issue(('A',n))
    rdA(0)
    for mu in range(8): rdB(0,mu)
    rdA(1)
    for rho in range(8):
        for i in range(8):
            n = 8*rho+i
            if n+2 < 64: rdA(n+2)
            if rho<7 and i<4:
                rdB(rho+1, 2*i); rdB(rho+1, 2*i+1)
            lg.wait(('A',n))
            for J in range(i,8):
                lg.wait(('B',rho,J-i))
                a=ACC(J)
                k(f'v_mfma_f32_16x16x32_bf16 v[{a}:{a+3}], v[{AF(n)}:{AF(n)+3}], v[{BF(rho&1,J-i)}:{BF(rho&1,J-i)+3}], v[{a}:{a+3}]')
    ts('conv main')
    M=f's{S_MASK}'
    k(f'''
    s_waitcnt lgkmcnt(0)
    s_and_b32 s48, s53, 1
    s_lshl_b32 s48, s48, 4
    s_lshr_b32 s38, s38, s48
    s_lshl_b32 s38, s38, 16
    v_lshlrev_b32 v6, 5, v4
    v_lshl_add_u32 v6, v3, 3, v6
    s_add_u32 s47, s46, 512
    v_add_u32 v6, s47, v6
    ''')
    for J in range(8): k(f'ds_read_b64 v[{40+2*J}:{41+2*J}], v6 offset:{512*J}')
    for p in range(16): k(f'v_cvt_pk_bf16_f32 v{56+p}, v{8+2*p}, v{9+2*p}')
    for p in range(16):
        k(f'v_lshlrev_b32 v{8+2*p}, 16, v{56+p}')
        k(f'v_and_b32 v{9+2*p}, {M}, v{56+p}')
    k('s_waitcnt lgkmcnt(0)')
    for i in range(16):
        k(f'v_lshlrev_b32 v{72+2*i}, 16, v{40+i}')
        k(f'v_and_b32 v{73+2*i}, {M}, v{40+i}')
    for i in range(32): k(f'v_mul_f32 v{72+i}, s38, v{72+i}')
    for i in range(16): k(f'v_cvt_pk_bf16_f32 v{40+i}, v{72+2*i}, v{73+2*i}')
    for i in range(16):
        k(f'v_lshlrev_b32 v{72+2*i}, 16, v{40+i}')
        k(f'v_and_b32 v{73+2*i}, {M}, v{40+i}')
    for i in range(32): k(f'v_add_f32 v{72+i}, v{8+i}, v{72+i}')
    for i in range(16): k(f'v_cvt_pk_bf16_f32 v{40+i}, v{72+2*i}, v{73+2*i}')
    for J in range(8): k(f'ds_write_b64 v6, v[{40+2*J}:{41+2*J}] offset:{512*J}')
    k(f's_branch {join}')
    k(f'{prep}:')
    def transpose_store(dest, step):
        k('s_mov_b32 s60, 0x05040100')
        k('s_mov_b32 s61, 0x07060302')
        k('s_waitcnt vmcnt(2)')
        for m in range(8):
            for p in range(4):
                sel = 's61' if m&1 else 's60'
                k(f'v_perm_b32 v{40+4*m+p}, v{168+4*(2*p+1)+(m>>1)}, v{168+4*(2*p)+(m>>1)}, {sel}')
        k(f's_lshl_b32 s42, s51, 13')
        k(f's_add_u32 s42, s42, {PREP_LDS}')
        k('v_and_b32 v5, 7, v1')
        k('v_lshlrev_b32 v6, 7, v1')
        k('v_add_u32 v6, s42, v6')
        for m in range(8):
            k(f'v_xor_b32 v7, {m}, v5')
            k(f'v_lshl_add_u32 v7, v7, 4, v6')
            k(f'ds_write_b128 v7, v[{40+4*m}:{43+4*m}]')
        k('v_lshrrev_b32 v5, 5, v1')
        k('v_bfe_u32 v6, v1, 3, 2')
        k('v_lshl_add_u32 v5, v5, 2, v6')
        k('v_and_b32 v6, 7, v1')
        k('v_xor_b32 v6, v6, v5')
        k('v_and_b32 v6, 7, v6')
        k('v_lshlrev_b32 v6, 4, v6')
        k('v_lshl_add_u32 v6, v5, 7, v6')
        k('v_add_u32 v6, s42, v6')
        k('s_waitcnt lgkmcnt(0)')
        for i in range(8):
            k(f'ds_read_b128 v[{8+4*i}:{11+4*i}], v6 offset:{i*1024}')
        dest()
        k('s_waitcnt lgkmcnt(0)')
        for i in range(8):
            k(f's_mov_b32 s42, {i*step}')
            k(f'buffer_store_dwordx4 v[{8+4*i}:{11+4*i}], v4, {WS}, s42 offen sc1')
    def dest_wq():
        k(f'''
        s_and_b32 s60, s56, 1
        s_lshl_b32 s60, s60, 4
        v_lshrrev_b32 v4, 5, v1
        v_add_u32 v4, s60, v4
        s_mov_b32 s61, 196608
        v_mul_lo_u32 v4, s61, v4
        s_lshr_b32 s62, s55, 1
        s_mul_i32 s62, s62, 3072
        s_lshr_b32 s63, s56, 1
        s_lshl_b32 s63, s63, 10
        s_add_u32 s62, s62, s63
        s_and_b32 s63, s55, 1
        s_lshl_b32 s63, s63, 9
        s_add_u32 s62, s62, s63
        s_add_u32 s62, s62, {WS_WQ}
        v_and_b32 v5, 31, v1
        v_lshl_add_u32 v4, v5, 4, v4
        v_add_u32 v4, s62, v4
        ''')
    wo2=uid('wo2')
    k(f's_cmp_ge_u32 s54, 768')
    k(f's_cbranch_scc1 {wo2}')
    transpose_store(dest_wq, 2*196608)
    k(f's_branch {join}')
    k(f'{wo2}:')
    def dest_wo():
        k(f'''
        s_lshl_b32 s60, s56, 20
        v_lshrrev_b32 v4, 5, v1
        v_lshlrev_b32 v4, 10, v4
        s_lshr_b32 s62, s55, 1
        s_lshl_b32 s62, s62, 11
        s_and_b32 s63, s55, 1
        s_lshl_b32 s63, s63, 9
        s_add_u32 s62, s62, s63
        s_add_u32 s62, s62, s60
        s_add_u32 s62, s62, {WS_WO}
        v_and_b32 v5, 31, v1
        v_lshl_add_u32 v4, v5, 4, v4
        v_add_u32 v4, s62, v4
        ''')
    transpose_store(dest_wo, 131072)
    k(f'{join}:')
    ts('join')
    k(f'''
    s_waitcnt lgkmcnt(0)
    s_barrier
    v_lshlrev_b32 v6, 2, v0
    v_add_u32 v6, {UB+512}, v6
    ''')
    for u in range(2):
        for ch in range(4): k(f'ds_read_b32 v{8+4*u+ch}, v6 offset:{ch*UCH+u*2048}')
    k(f'''
    s_mov_b32 s60, 0x05040100
    s_mov_b32 s61, 0x07060302
    s_lshl_b32 s54, s{S_G}, 5
    s_add_u32 s54, s54, s{S_J}
    s_mul_i32 s54, s54, {CS4}
    s_add_u32 s54, s54, {WS_Y}
    v_lshl_add_u32 v7, v0, 4, s54
    s_mov_b32 s55, 8192
    s_waitcnt lgkmcnt(0)
    ''')
    for u in range(2):
        b=8+4*u; o=16+4*u
        k(f'v_perm_b32 v{o}, v{b+1}, v{b}, s60')
        k(f'v_perm_b32 v{o+1}, v{b+3}, v{b+2}, s60')
        k(f'v_perm_b32 v{o+2}, v{b+1}, v{b}, s61')
        k(f'v_perm_b32 v{o+3}, v{b+3}, v{b+2}, s61')
    k(f'buffer_store_dwordx4 v[16:19], v7, {WS}, 0 offen sc1')
    k(f'buffer_store_dwordx4 v[20:23], v7, {WS}, s55 offen sc1')
    publish(k, F_CONV, False)
    ts('conv published')

E_LDS = LDS_TOTAL-2048
SLAB=24576; NSLOT=5
def ka_dma(k, slab, vm=None):
    k(f's_add_u32 m0, s57, {(slab%NSLOT)*SLAB}')
    k(f's_mov_b32 s44, {WS_WQ+slab*SLAB}')
    for t in range(3):
        k(f'buffer_load_dwordx4 v236, {WS}, s44 offen offset:{t*1024} lds')
        if vm: vm.issue(('dma',slab))
def ka_addr(k):
    k(f'''
    s_mul_i32 s56, s{S_J}, {0 if 'wsame' in EXP else 196608}
    s_mul_i32 s57, s{S_WAVE}, 3072
    s_add_u32 s56, s56, s57
    v_and_b32 v236, 63, v0
    v_lshl_add_u32 v236, v236, 4, s56
    ''')

def phase_e(k, ts, layer):
    M=f's{S_MASK}'
    first = layer==0
    xout = WS_X1 if first else WS_X3
    k(f'''
    v_and_b32 v1, 7, v0
    v_lshrrev_b32 v2, 3, v0
    s_lshl_b32 s42, s{S_G}, 8
    s_lshl_b32 s43, s{S_J}, 3
    s_add_u32 s42, s42, s43
    v_add_u32 v3, s42, v1
    v_lshrrev_b32 v4, 6, v0
    v_mul_u32_u24 v5, {CS8}, v2
    v_lshl_add_u32 v5, v3, 4, v5
    v_mul_u32_u24 v7, {2*CS4}, v2
    v_lshl_add_u32 v7, v3, 3, v7
    v_lshlrev_b32 v96, 6, v1
    v_add_u32 v96, {E_LDS}, v96
    v_lshl_add_u32 v97, v4, 3, v96
    ''')
    X = lambda i: 24+i
    T = lambda i: 40+i
    P = lambda i: 56+i
    Yf = lambda i: 64+i
    def unpack(dst, src, n=8):
        for i in range(n):
            k(f'v_lshlrev_b32 v{dst(2*i)}, 16, v{src(i)}')
            k(f'v_and_b32 v{dst(2*i+1)}, {M}, v{src(i)}')
    def pack(dst, src, n=8):
        for i in range(n): k(f'v_cvt_pk_bf16_f32 v{dst(i)}, v{src(2*i)}, v{src(2*i+1)}')
    def stats(ldsoff):
        k(f'v_add_f32 v98, v{X(0)}, v{X(1)}')
        k(f'v_add_f32 v102, v{X(2)}, v{X(3)}')
        k(f'v_mul_f32 v99, v{X(0)}, v{X(0)}')
        k(f'v_mul_f32 v103, v{X(1)}, v{X(1)}')
        k(f'v_fmac_f32 v99, v{X(2)}, v{X(2)}')
        k(f'v_fmac_f32 v103, v{X(3)}, v{X(3)}')
        for i in range(4,16,2):
            k(f'v_add_f32 v98, v98, v{X(i)}')
            k(f'v_add_f32 v102, v102, v{X(i+1)}')
            k(f'v_fmac_f32 v99, v{X(i)}, v{X(i)}')
            k(f'v_fmac_f32 v103, v{X(i+1)}, v{X(i+1)}')
        k('''
        v_add_f32 v98, v98, v102
        v_add_f32 v99, v99, v103
        v_add_f32_dpp v98, v98, v98 row_ror:8 row_mask:0xf bank_mask:0xf
        v_add_f32_dpp v99, v99, v99 row_ror:8 row_mask:0xf bank_mask:0xf
        v_mov_b32 v102, v98
        v_mov_b32 v103, v99
        v_permlane16_swap_b32 v98, v102
        v_permlane16_swap_b32 v99, v103
        v_add_f32 v98, v98, v102
        v_add_f32 v99, v99, v103
        v_mov_b32 v102, v98
        v_mov_b32 v103, v99
        v_permlane32_swap_b32 v98, v102
        v_permlane32_swap_b32 v99, v103
        v_add_f32 v98, v98, v102
        v_add_f32 v99, v99, v103
        ''')
        k(f'ds_write_b64 v97, v[98:99] offset:{ldsoff}')
        k('s_waitcnt lgkmcnt(0)')
        k('s_barrier')
        for i in range(4): k(f'ds_read_b128 v[{104+4*i}:{107+4*i}], v96 offset:{ldsoff+16*i}')
        k('s_waitcnt lgkmcnt(0)')
        k(f'''
        v_add_f32 v104, v104, v106
        v_add_f32 v105, v105, v107
        v_add_f32 v108, v108, v110
        v_add_f32 v109, v109, v111
        v_add_f32 v112, v112, v114
        v_add_f32 v113, v113, v115
        v_add_f32 v116, v116, v118
        v_add_f32 v117, v117, v119
        v_add_f32 v104, v104, v108
        v_add_f32 v105, v105, v109
        v_add_f32 v112, v112, v116
        v_add_f32 v113, v113, v117
        v_add_f32 v104, v104, v112
        v_add_f32 v105, v105, v113
        v_mul_f32 v104, 0x3a800000, v104
        v_mul_f32 v105, 0x3a800000, v105
        v_fma_f32 v105, -v104, v104, v105
        v_max_f32 v105, 0, v105
        v_cvt_pk_bf16_f32 v106, v104, v105
        v_lshlrev_b32 v100, 16, v106
        v_and_b32 v105, {M}, v106
        v_add_f32 v105, 0x3727c5ac, v105
        v_cvt_pk_bf16_f32 v106, v105, v105
        v_and_b32 v105, {M}, v106
        v_sqrt_f32 v105, v105
        v_cvt_pk_bf16_f32 v106, v105, v105
        v_and_b32 v105, {M}, v106
        v_rcp_f32 v101, v105
        ''')
    def normalize():
        for i in range(16): k(f'v_sub_f32 v{T(i)}, v{X(i)}, v100')
        pack(P, T); unpack(T, P)
        for i in range(16): k(f'v_mul_f32 v{T(i)}, v{T(i)}, v101')
        pack(P, T)
    def yloads():
        k(f's_mov_b32 s42, {WS_Y}')
        k(f's_mov_b32 s43, {WS_Y+CS4}')
        k(f's_mov_b32 s44, {WS_Y+128*CS4}')
        k(f's_mov_b32 s45, {WS_Y+129*CS4}')
        for i in range(4):
            k(f'buffer_load_dwordx2 v[{16+2*i}:{17+2*i}], v7, {WS}, s{42+i} offen')
    ka_addr(k)
    if first:
        k(f'''
        s_load_dwordx2 s[{S_B}:{S_B+1}], s[0:1], {ARG['wphi']}
        s_mov_b32 s{S_B+2}, 65536
        v_and_b32 v121, 63, v0
        v_lshrrev_b32 v122, 5, v121
        v_and_b32 v121, 31, v121
        s_lshl_b32 s46, s{S_J}, 11
        v_lshlrev_b32 v120, 8, v122
        v_lshl_add_u32 v120, v121, 1, v120
        v_add_u32 v120, s46, v120
        ''')
        k('s_waitcnt lgkmcnt(0)')
        for i in range(2):
            for jj in range(8):
                d = 16*i + 8*(jj>>2) + (jj&3)
                k(f'buffer_load_ushort v{200+8*i+jj}, v120, s[{S_B}:{S_B+3}], 0 offen offset:{d*64}')
        unpack(X, lambda i: 160+i)
        stats(0)
        normalize()
        unpack(T, P)
        k('s_waitcnt vmcnt(0)')
        for i in range(2):
            for p in range(4):
                k(f'v_lshl_or_b32 v{240+4*i+p}, v{200+8*i+2*p+1}, 16, v{200+8*i+2*p}')
        ts('e pre')
        wait_flags(k, F_CONV, 'all')
        ts('e waited')
        yloads()
        z=uid('nz')
        k(f'''
        s_or_b32 s42, s{S_G}, s{S_J}
        s_or_b32 s42, s42, s{S_WAVE}
        s_cmp_lg_u32 s42, 0
        s_cbranch_scc1 {z}
        v_mov_b32 v200, {WS_NONCE}
        v_mov_b32 v202, s{S_N0}
        v_mov_b32 v203, s{S_N1}
        s_mov_b64 exec, 1
        buffer_store_dwordx2 v[202:203], v200, {WS}, 0 offen sc1
        s_mov_b64 exec, -1
        s_waitcnt vmcnt(0)
        {z}:
        s_waitcnt vmcnt(0)
        ''')
    else:
        wait_flags(k, F_KB0, 'group', yloads)
        ts('e waited')
        k(f'''
        s_mov_b32 s42, {WS_X2}
        s_mov_b32 s43, {WS_X2+64*CS8}
        buffer_load_dwordx4 v[8:11], v5, {WS}, s42 offen
        buffer_load_dwordx4 v[12:15], v5, {WS}, s43 offen
        ''')
        k('s_waitcnt vmcnt(0)')
        unpack(X, lambda i: 8+i)
        stats(0)
        normalize()
        unpack(T, P)
    unpack(Yf, lambda i: 16+i)
    for i in range(16): k(f'v_mul_f32 v{T(i)}, v{T(i)}, v{Yf(i)}')
    pack(P, T); unpack(T, P)
    for i in range(16): k(f'v_add_f32 v{X(i)}, v{X(i)}, v{T(i)}')
    XP = lambda i: 80+i
    pack(XP, X); unpack(X, XP)
    lstores(k, [f's_mov_b32 s42, {xout}', f's_mov_b32 s43, {xout+64*CS8}',
                f'buffer_store_dwordx4 v[80:83], v5, {WS}, s42 offen', f'buffer_store_dwordx4 v[84:87], v5, {WS}, s43 offen'])
    stats(512)
    normalize()
    lstores(k, [f's_mov_b32 s42, {WS_XN[layer]}', f's_mov_b32 s43, {WS_XN[layer]+64*CS8}',
                f'buffer_store_dwordx4 v[56:59], v5, {WS}, s42 offen', f'buffer_store_dwordx4 v[60:63], v5, {WS}, s43 offen'])
    publish(k, F_E0+layer, True)
    ts('e published')

RED_Z=65536; KVA=67584; ZA=71680
from ka import mfma
def softmax_pair(k, src, EP, EN, outP, outN, tmp):
    import ka
    ka.softmax_pair(k, src, EP, EN, outP, outN, tmp)

KB_BASE=[73728, 73728+32768, 0, 32768]
def kb_addr(k):
    k(f'''
    s_lshr_b32 s58, s{S_J}, 1
    s_and_b32 s59, s{S_WAVE}, 3
    s_lshr_b32 s60, s{S_WAVE}, 2
    s_lshl_b32 s61, s59, 12
    s_lshl_b32 s62, s60, 14
    s_add_u32 s61, s61, s62
    s_lshl_b32 s62, s59, 12
    s_lshl_b32 s63, s60, 16
    s_add_u32 s62, s62, s63
    s_mul_i32 s63, s58, {0 if 'wsame' in EXP else 131072}
    s_add_u32 s62, s62, s63
    v_and_b32 v237, 63, v0
    v_lshl_add_u32 v237, v237, 4, s62
    ''')
def kb_dma(k, s, vm=None):
    k(f's_add_u32 m0, s61, {KB_BASE[s]}')
    k(f's_mov_b32 s44, {WS_WO+s*16384}')
    for t in range(4):
        k(f'buffer_load_dwordx4 v237, {WS}, s44 offen offset:{t*1024} lds')
        if vm: vm.issue(('dma',s))

def phase_ka(k, ts, layer):
    vm = Q(k,'vmcnt',63); lg = Q(k,'lgkmcnt',15)
    k(f'''
    v_and_b32 v1, 63, v0
    v_and_b32 v5, 31, v1
    v_lshrrev_b32 v6, 5, v1
    s_lshl_b32 s42, s{S_G}, 8
    s_lshl_b32 s43, s{S_WAVE}, 5
    s_add_u32 s42, s42, s43
    v_add_u32 v2, s42, v5
    v_lshlrev_b32 v2, 4, v2
    v_mul_u32_u24 v7, {CS8}, v6
    v_add_u32 v2, v2, v7
    v_lshlrev_b32 v3, 4, v1
    v_add_u32 v228, {2*SLAB}, v3
    v_add_u32 v229, {4*SLAB}, v3
    ''')
    ACQ, ACK, ACV = 8, 24, 40
    for i in range(48): k(f'v_mov_b32 v{8+i}, 0')
    early=uid('early')
    k(f'''
    s_sub_u32 s46, s{S_WAVE}, 1
    s_cmp_ge_u32 s46, 6
    s_cbranch_scc1 {early}
    s_lshl_b32 s46, s46, 12
    s_mul_i32 s47, s{S_J}, {0 if 'wsame' in EXP else 196608}
    s_add_u32 s47, s47, s46
    v_add_u32 v7, s47, v3
    ''')
    for sl in range(1):
        k(f's_add_u32 m0, s46, {sl*SLAB}')
        k(f's_mov_b32 s44, {WS_WQ+sl*SLAB}')
        for t in range(4): k(f'buffer_load_dwordx4 v7, {WS}, s44 offen offset:{t*1024} lds')
    k(f'{early}:')
    wait_flags(k, F_E0+layer, 'group')
    ts('ka waited')
    XD = 24
    XB = lambda s: 56+4*(s%XD)
    def xload(step):
        k(f's_mov_b32 s45, {(WS_XN[1-layer] if "xclean" in EXP else WS_XN[layer])+step*2*CS8}')
        k(f'buffer_load_dwordx4 v[{XB(step)}:{XB(step)+3}], v2, {WS}, s45 offen sc1')
        vm.issue(('x',step))
    WB = lambda st,t: 152+12*st+4*t
    def wread(step):
        slab, j = step//8, step%8
        st = step&1
        for t in range(3):
            sl = slab%NSLOT
            base = (3,3,228,228,229)[sl]; rel = (0,SLAB,0,SLAB,0)[sl]
            k(f'ds_read_b128 v[{WB(st,t)}:{WB(st,t)+3}], v{base} offset:{rel + j*3072 + t*1024}')
            lg.issue(('w',step))
    for s in range(4): xload(s)
    ka_dma(k, 1, vm)
    for s in range(4,8): xload(s)
    nx=[8]
    vm.wait(('x',0))
    k('s_barrier')
    ts('ka first')
    wread(0)
    for step in range(64):
        slab, j = step//8, step%8
        if step+1 < 64: wread(step+1)
        lg.wait(('w',step))
        vm.wait(('x',step))
        st = step&1; X = XB(step)
        if 'nomfma' not in EXP:
            mfma(k, ACQ, WB(st,0), X)
            mfma(k, ACK, WB(st,1), X)
            mfma(k, ACV, X, WB(st,2))
        for _ in range(3):
            if nx[0] < 64 and nx[0] <= step+XD and 'nox' not in EXP:
                xload(nx[0]); nx[0]+=1
        if step==1: ka_dma(k, 2, vm)
        if step==5: ka_dma(k, 3, vm)
        if step==44:
            touch(k, 0, [t_o(k,WS_O[layer],0), t_o(k,WS_O[layer],1)] + ([t_x2(k,WS_X2,0), t_x2(k,WS_X2,1)] if layer==0 else []))
        if j==3 and slab+1 < 8:
            vm.wait(('dma',slab+1))
            k('s_barrier')
            if slab+4 < 8 and 'nowdma' not in EXP: ka_dma(k, slab+4, vm)
    ts('ka main')
    vm.drain()
    k('s_barrier')
    kb_addr(k); kb_dma(k,0); kb_dma(k,1)
    QP = 212
    for p in range(8): k(f'v_cvt_pk_bf16_f32 v{QP+p}, v{8+2*p}, v{8+2*p+1}')
    KP, VP, PK, EP, EN = 56, 64, 72, 132, 148
    WP0, WP1, ID0, ID1 = 240, 244, 248, 252
    for p in range(8): k(f'v_cvt_pk_bf16_f32 v{KP+p}, v{ACK+2*p}, v{ACK+2*p+1}')
    mfma(k, PK, WP0, KP, 0)
    mfma(k, PK, WP1, KP+4)
    for p in range(8): k(f'v_cvt_pk_bf16_f32 v{VP+p}, v{ACV+2*p}, v{ACV+2*p+1}')
    for i in range(4): k(f'v_mov_b32 v{128+i}, 0x3f803f80')
    PHP, PHN, TMP = 88, 96, 104
    softmax_pair(k, PK, EP, EN, PHP, PHN, TMP)
    KVP, KVN, ZP, ZN = 164, 180, 196, 112
    T1, T2, PT1, PT2 = 132, 148, 72, 80
    mfma(k, T1, PHP, ID0, 0)
    mfma(k, T2, PHN, ID0, 0)
    mfma(k, T1, PHP+4, ID1)
    mfma(k, T2, PHN+4, ID1)
    for p in range(8): k(f'v_cvt_pk_bf16_f32 v{PT1+p}, v{T1+2*p}, v{T1+2*p+1}')
    for p in range(8): k(f'v_cvt_pk_bf16_f32 v{PT2+p}, v{T2+2*p}, v{T2+2*p+1}')
    mfma(k, KVP, PT1, VP, 0)
    mfma(k, ZP, PT1, 128, 0)
    mfma(k, KVN, PT2, VP, 0)
    mfma(k, ZN, PT2, 128, 0)
    mfma(k, KVP, PT1+4, VP+4)
    mfma(k, ZP, PT1+4, 128)
    mfma(k, KVN, PT2+4, VP+4)
    mfma(k, ZN, PT2+4, 128)
    ts('ka kside')
    k(f's_lshl_b32 s46, s{S_WAVE}, 13')
    k('v_add_u32 v7, s46, v3')
    for fz,base in enumerate((KVP,KVN)):
        for g in range(4):
            k(f'ds_write_b128 v7, v[{base+4*g}:{base+4*g+3}] offset:{(fz*4+g)*1024}')
    k(f'''
    s_lshl_b32 s46, s{S_WAVE}, 8
    s_add_u32 s46, s46, {RED_Z}
    v_lshlrev_b32 v7, 4, v6
    v_add_u32 v7, s46, v7
    s_mov_b32 exec_lo, 1
    s_mov_b32 exec_hi, 1
    ''')
    for fz,base in enumerate((ZP,ZN)):
        for g in range(4):
            k(f'ds_write_b128 v7, v[{base+4*g}:{base+4*g+3}] offset:{fz*128+g*32}')
    k('s_mov_b64 exec, -1')
    k('s_waitcnt lgkmcnt(0)')
    k('s_barrier')
    k(f's_lshl_b32 s46, s{S_WAVE}, 10')
    k('v_add_u32 v7, s46, v3')
    for w in range(8): k(f'ds_read_b128 v[{164+4*w}:{167+4*w}], v7 offset:{w*8192}')
    k(f'''
    v_and_b32 v9, 15, v1
    v_lshrrev_b32 v10, 1, v9
    v_lshlrev_b32 v10, 8, v10
    v_and_b32 v11, 1, v9
    v_lshl_add_u32 v10, v11, 4, v10
    s_lshl_b32 s46, s{S_WAVE}, 5
    s_add_u32 s46, s46, {RED_Z}
    v_add_u32 v10, s46, v10
    ds_read_b128 v[196:199], v10
    ''')
    PB = WS_PART+layer*PART_LAYER
    k(f'''
    s_lshl_b32 s47, s{S_J}, 3
    s_add_u32 s47, s47, s{S_G}
    s_mul_i32 s47, s47, {PART_STRIDE}
    s_add_u32 s47, s47, {PB}
    v_add_u32 v8, s47, v7
    ''')
    def sum8(base):
        for i in range(4):
            k(f'v_add_f32 v{base+i}, v{base+i}, v{base+4+i}')
            k(f'v_add_f32 v{base+8+i}, v{base+8+i}, v{base+12+i}')
            k(f'v_add_f32 v{base+16+i}, v{base+16+i}, v{base+20+i}')
            k(f'v_add_f32 v{base+24+i}, v{base+24+i}, v{base+28+i}')
        for i in range(4):
            k(f'v_add_f32 v{base+i}, v{base+i}, v{base+8+i}')
            k(f'v_add_f32 v{base+16+i}, v{base+16+i}, v{base+24+i}')
        for i in range(4):
            k(f'v_add_f32 v{base+i}, v{base+i}, v{base+16+i}')
    def lane_sum(base):
        for mod in ('quad_perm:[2,3,0,1]','row_ror:4','row_ror:8'):
            for i in range(4):
                k(f'v_add_f32_dpp v{base+i}, v{base+i}, v{base+i} {mod} row_mask:0xf bank_mask:0xf')
    k('s_waitcnt lgkmcnt(0)')
    sum8(164)
    k(f'''
    v_cvt_pk_bf16_f32 v164, v164, v165
    v_cvt_pk_bf16_f32 v165, v166, v167
    v_mov_b32 v166, s{S_N0}
    v_mov_b32 v167, s{S_N1}
    buffer_store_dwordx4 v[164:167], v8, {WS}, 0 offen sc1
    ''')
    lane_sum(196)
    k(f'''
    v_cvt_pk_bf16_f32 v196, v196, v197
    v_cvt_pk_bf16_f32 v197, v198, v199
    v_mov_b32 v198, s{S_N0}
    v_mov_b32 v199, s{S_N1}
    s_lshl_b32 s46, s{S_WAVE}, 5
    s_add_u32 s46, s46, s47
    s_add_u32 s46, s46, 8192
    v_lshl_add_u32 v9, v11, 4, s46
    s_mov_b64 exec, 3
    buffer_store_dwordx4 v[196:199], v9, {WS}, 0 offen sc1
    s_mov_b64 exec, -1
    ''')
    mfma(k, PK, WP0, QP, 0)
    mfma(k, PK, WP1, QP+4)
    QHP, QHN = 88, 96
    softmax_pair(k, PK, EP, EN, QHP, QHN, TMP)
    ts('ka qside')
    k('s_barrier')
    k(f'''
    s_mul_i32 s47, s{S_J}, {8*PART_STRIDE}
    s_add_u32 s47, s47, {PB}
    v_add_u32 v8, s47, v7
    v_and_b32 v9, 15, v1
    v_lshrrev_b32 v10, 1, v9
    v_mul_u32_u24 v10, {PART_STRIDE}, v10
    v_and_b32 v11, 1, v9
    v_lshl_add_u32 v10, v11, 4, v10
    s_lshl_b32 s46, s{S_WAVE}, 5
    s_add_u32 s46, s46, s47
    s_add_u32 s46, s46, 8192
    v_add_u32 v10, s46, v10
    s_mov_b32 s50, 0
    ''')
    again,got = uid('ga'),uid('gg')
    k(f'{again}:')
    for w in range(8):
        k(f's_mov_b32 s51, {w*PART_STRIDE}')
        k(f'buffer_load_dwordx4 v[{164+4*w}:{167+4*w}], v8, {WS}, s51 offen sc1')
    k(f'buffer_load_dwordx4 v[196:199], v10, {WS}, 0 offen sc1')
    k('s_add_u32 s50, s50, 1')
    k(f's_cmp_gt_u32 s50, {SPIN_MAX}')
    k(f's_cbranch_scc1 {got}')
    k('s_waitcnt vmcnt(0)')
    k(f'v_xor_b32 v132, s{S_N0}, v198')
    k(f'v_xor_b32 v133, s{S_N1}, v199')
    for w in range(8):
        k(f'v_xor_b32 v134, s{S_N0}, v{166+4*w}')
        k(f'v_xor_b32 v135, s{S_N1}, v{167+4*w}')
        k(f'v_or3_b32 v{132+(w&1)}, v{132+(w&1)}, v134, v135')
    k('v_or_b32 v132, v132, v133')
    k('v_cmp_ne_u32 vcc, 0, v132')
    k(f's_cbranch_vccnz {again}')
    k(f'{got}:')
    k('s_waitcnt vmcnt(0)')
    ts('ka kv waited')
    kb_dma(k,2); kb_dma(k,3)
    M=f's{S_MASK}'
    for w in range(8):
        for h in range(2):
            k(f'v_lshlrev_b32 v{132+4*w+2*h}, 16, v{164+4*w+h}')
            k(f'v_and_b32 v{133+4*w+2*h}, {M}, v{164+4*w+h}')
    k(f'v_lshlrev_b32 v200, 16, v196')
    k(f'v_and_b32 v201, {M}, v196')
    k(f'v_lshlrev_b32 v202, 16, v197')
    k(f'v_and_b32 v203, {M}, v197')
    sum8(132)
    lane_sum(200)
    k(f'''
    v_cvt_pk_bf16_f32 v164, v132, v133
    v_cvt_pk_bf16_f32 v165, v134, v135
    v_cvt_pk_bf16_f32 v166, v200, v201
    v_cvt_pk_bf16_f32 v167, v202, v203
    s_lshr_b32 s46, s{S_WAVE}, 1
    s_lshl_b32 s47, s46, 10
    s_and_b32 s48, s{S_WAVE}, 1
    s_lshl_b32 s48, s48, 3
    s_add_u32 s47, s47, s48
    s_add_u32 s47, s47, {KVA}
    v_add_u32 v9, s47, v3
    ds_write_b64 v9, v[164:165]
    s_lshl_b32 s46, s46, 5
    s_add_u32 s46, s46, s48
    s_add_u32 s46, s46, {ZA}
    v_lshl_add_u32 v9, v11, 4, s46
    s_mov_b64 exec, 3
    ds_write_b64 v9, v[166:167]
    s_mov_b64 exec, -1
    s_waitcnt lgkmcnt(0)
    s_barrier
    v_lshlrev_b32 v10, 4, v6
    v_add_u32 v10, {ZA}, v10
    v_add_u32 v11, {KVA}, v3
    ''')
    ts('ka reduced')
    KA_, ZA_, NUM, DEN = 132, 148, 164, 180
    for i in range(4):
        k(f'ds_read_b128 v[{KA_+4*i}:{KA_+4*i+3}], v11 offset:{i*1024}')
        k(f'ds_read_b128 v[{ZA_+4*i}:{ZA_+4*i+3}], v10 offset:{i*32}')
    k('s_waitcnt lgkmcnt(0)')
    PHQ = [QHP, QHP+4, QHN, QHN+4]
    for i in range(4):
        mfma(k, NUM, KA_+4*i, PHQ[i], 0 if i==0 else None)
        mfma(k, DEN, ZA_+4*i, PHQ[i], 0 if i==0 else None)
    k(f'v_add_f32 v9, 0x358637bd, v{DEN}')
    k('v_rcp_f32 v9, v9')
    for i in range(16): k(f'v_mul_f32 v{NUM+i}, v{NUM+i}, v9')
    OP = 56
    for p in range(8): k(f'v_cvt_pk_bf16_f32 v{OP+p}, v{NUM+2*p}, v{NUM+2*p+1}')
    for g in (0,2):
        k(f'v_permlane32_swap_b32 v{OP+2*g}, v{OP+2*g+2}')
        k(f'v_permlane32_swap_b32 v{OP+2*g+1}, v{OP+2*g+3}')
    k(f'''
    s_mul_i32 s46, s{S_J}, {4*CS8}
    v_add_u32 v9, s46, v2
    ''')
    lstores(k, [f's_mov_b32 s46, {WS_O[layer]}', f's_mov_b32 s47, {WS_O[layer]+2*CS8}',
                f'buffer_store_dwordx4 v[{OP}:{OP+3}], v9, {WS}, s46 offen', f'buffer_store_dwordx4 v[{OP+4}:{OP+7}], v9, {WS}, s47 offen'])
    publish(k, F_KA0+layer, True)
    ts('ka published')

def phase_kb(k, ts, layer):
    M=f's{S_MASK}'
    vm = Q(k,'vmcnt',63); lg = Q(k,'lgkmcnt',15)
    last = layer==1
    xin = WS_X1 if layer==0 else WS_X3
    k(f'''
    v_and_b32 v1, 63, v0
    v_and_b32 v5, 31, v1
    v_lshrrev_b32 v6, 5, v1
    s_and_b32 s42, s{S_J}, 1
    s_lshl_b32 s43, s{S_G}, 1
    s_add_u32 s42, s42, s43
    s_lshl_b32 s42, s42, 7
    s_lshl_b32 s43, s59, 5
    s_add_u32 s42, s42, s43
    v_add_u32 v7, s42, v5
    v_mul_u32_u24 v8, {CS8}, v6
    v_lshl_add_u32 v8, v7, 4, v8
    s_mul_i32 s42, s60, {64*CS8}
    v_add_u32 v2, s42, v8
    v_lshlrev_b32 v3, 4, v1
    s_lshl_b32 s43, s60, 14
    s_lshl_b32 s44, s60, 10
    s_add_u32 s45, s43, s44
    v_add_u32 v9, s45, v3
    s_sub_u32 s45, s43, s44
    s_add_u32 s45, s45, 1024
    v_add_u32 v10, s45, v3
    v_add_u32 v13, {KB_BASE[0]}, v9
    v_add_u32 v14, {KB_BASE[0]}, v10
    s_lshl_b32 s50, s58, 3
    s_lshl_b32 s51, s60, 2
    s_add_u32 s50, s50, s51
    s_mul_i32 s50, s50, {CS8}
    v_add_u32 v11, s50, v8
    s_mov_b32 s42, {xin}
    s_mov_b32 s43, {xin+2*CS8}
    buffer_load_dwordx4 v[112:115], v11, {WS}, s42 offen sc1
    buffer_load_dwordx4 v[116:119], v11, {WS}, s43 offen sc1
    ''')
    ACA, ACB = 16, 32
    for i in range(32): k(f'v_mov_b32 v{16+i}, 0')
    wait_flags(k, F_KA0+layer, 'group')
    ts('kb waited')
    XB = lambda s: 48+4*(s%16)
    def xload(step):
        k(f's_mov_b32 s49, {(WS_O[1-layer] if "xclean" in EXP else WS_O[layer])+step*2*CS8}')
        k(f'buffer_load_dwordx4 v[{XB(step)}:{XB(step)+3}], v2, {WS}, s49 offen sc1')
        vm.issue(('x',step))
    and_base = lambda step: (13,14,(step//8)*32768+(step%8)*2048) if step<16 else (9,10,(step//8-2)*32768+(step%8)*2048)
    WB = lambda st,t: 120+8*st+4*t
    def wread(step):
        st = step&1; a,b,off = and_base(step)
        k(f'ds_read_b128 v[{WB(st,0)}:{WB(st,0)+3}], v{a} offset:{off}'); lg.issue(('w',step))
        k(f'ds_read_b128 v[{WB(st,1)}:{WB(st,1)+3}], v{b} offset:{off}'); lg.issue(('w',step))
    for s in range(16): xload(s)
    if 'kbfirst' in EXP:
        vm.wait(('x',0)); ts('kb first')
    wread(0)
    for step in range(32):
        if step+1 < 32: wread(step+1)
        lg.wait(('w',step))
        vm.wait(('x',step))
        st = step&1; X = XB(step)
        mfma(k, ACA, WB(st,0), X)
        mfma(k, ACB, WB(st,1), X)
        if step+16 < 32: xload(step+16)
        if step==16 and not last:
            touch(k, 0, [t_rows8(k,WS_X3,0), t_rows8(k,WS_X3,1), t_rows8(k,WS_XN[1],0), t_rows8(k,WS_XN[1],1)])
    ts('kb main')
    k('s_barrier')
    k(f's_lshl_b32 s53, s{S_WAVE}, 12')
    k('v_add_u32 v12, s53, v3')
    for g in range(4): k(f'ds_write_b128 v12, v[{ACB+4*g}:{ACB+4*g+3}] offset:{g*1024}')
    k(f'''
    s_xor_b32 s53, s{S_WAVE}, 4
    s_lshl_b32 s53, s53, 12
    v_add_u32 v12, s53, v3
    s_waitcnt lgkmcnt(0)
    s_barrier
    ''')
    for g in range(4): k(f'ds_read_b128 v[{ACB+4*g}:{ACB+4*g+3}], v12 offset:{g*1024}')
    k('s_waitcnt lgkmcnt(0)')
    for i in range(16): k(f'v_add_f32 v{ACA+i}, v{ACA+i}, v{ACB+i}')
    OP = 48
    for p in range(8): k(f'v_cvt_pk_bf16_f32 v{OP+p}, v{ACA+2*p}, v{ACA+2*p+1}')
    for g in (0,2):
        k(f'v_permlane32_swap_b32 v{OP+2*g}, v{OP+2*g+2}')
        k(f'v_permlane32_swap_b32 v{OP+2*g+1}, v{OP+2*g+3}')
    for i in range(8):
        k(f'v_lshlrev_b32 v{56+2*i}, 16, v{OP+i}')
        k(f'v_and_b32 v{57+2*i}, {M}, v{OP+i}')
        k(f'v_lshlrev_b32 v{72+2*i}, 16, v{112+i}')
        k(f'v_and_b32 v{73+2*i}, {M}, v{112+i}')
    for i in range(16): k(f'v_add_f32 v{56+i}, v{56+i}, v{72+i}')
    for i in range(8): k(f'v_cvt_pk_bf16_f32 v{OP+i}, v{56+2*i}, v{57+2*i}')
    if not last:
        lstores(k, [f's_mov_b32 s42, {WS_X2}', f's_mov_b32 s43, {WS_X2+2*CS8}',
                    f'buffer_store_dwordx4 v[{OP}:{OP+3}], v11, {WS}, s42 offen', f'buffer_store_dwordx4 v[{OP+4}:{OP+7}], v11, {WS}, s43 offen'])
        publish(k, F_KB0, True)
        ts('kb published')
    else:
        k(f'''
        s_load_dwordx2 s[{S_A}:{S_A+1}], s[0:1], {ARG['out']}
        s_mov_b32 s{S_A+2}, {4*MB}
        s_lshl_b32 s50, s58, 7
        s_lshl_b32 s51, s60, 6
        s_add_u32 s50, s50, s51
        v_lshlrev_b32 v12, 11, v7
        v_lshl_add_u32 v12, v6, 4, v12
        v_add_u32 v12, s50, v12
        s_waitcnt lgkmcnt(0)
        buffer_store_dwordx4 v[{OP}:{OP+3}], v12, s[{S_A}:{S_A+3}], 0 offen
        buffer_store_dwordx4 v[{OP+4}:{OP+7}], v12, s[{S_A}:{S_A+3}], 0 offen offset:32
        ''')

def gen(name, upto=99):
    k = Kern()
    k(f'.globl {name}\n.p2align 8\n.type {name},@function\n{name}:')
    k(f's_cmp_ge_u32 s2, 256\ns_cbranch_scc1 {name}_end')
    ts = Stamper(k)
    phases = [phase_init_p0, phase_conv,
              lambda k,ts: phase_e(k,ts,0), lambda k,ts: phase_ka(k,ts,0), lambda k,ts: phase_kb(k,ts,0),
              lambda k,ts: phase_e(k,ts,1), lambda k,ts: phase_ka(k,ts,1), lambda k,ts: phase_kb(k,ts,1)]
    for i,p in enumerate(phases):
        if i>=upto: break
        p(k,ts)
    k('s_waitcnt vmcnt(0) lgkmcnt(0)')
    ts.flush()
    k(f'{name}_end:\ns_endpgm')
    return k.finish()

def build(path, upto=99):
    name = NAME+'_kernel'
    head = open('cdna_kernels/'+NAME+'.s.ref').read().split('\n')
    lines=[l for l in head if l.startswith('; Kernarg') or l.startswith(';   offset')]
    lines.append(f'; @launch grid=(256,1,1) block=(512,1,1) lds={LDS_TOTAL}')
    lines.append('.amdgcn_target "amdgcn-amd-amdhsa--gfx950"\n.text')
    lines.append(gen(name, upto))
    lines.append(f'''.section .rodata,"a"
.p2align 6
.amdhsa_kernel {name}
  .amdhsa_next_free_vgpr 256
  .amdhsa_next_free_sgpr 102
  .amdhsa_accum_offset 256
  .amdhsa_group_segment_fixed_size 0
  .amdhsa_kernarg_size 104
  .amdhsa_user_sgpr_count 2
  .amdhsa_user_sgpr_kernarg_segment_ptr 1
  .amdhsa_system_sgpr_workgroup_id_x 1
.end_amdhsa_kernel''')
    open(path,'w').write('\n'.join(lines)+'\n')

if __name__=='__main__':
    upto = int(sys.argv[2]) if len(sys.argv)>2 else 99
    if len(sys.argv)>3 and sys.argv[3]=='stamp': mcommon.STAMPS=True
    build(sys.argv[1], upto)
```

```python
from asmlib import Kern
from track import Q
MB = 1<<20
ARG = dict(q=0,k=8,v=16,shift=24,ssmk=32,ssmd=40,x=48,wqkv=56,wphi=64,wo=72,out=80,dbg=88,ws=96)
UTS=4096+128; CS4=16384+128; CS8=32768+128
SZ_UT=1024*UTS; SZ_Y=256*CS4; SZ_X=128*CS8
WS_UT=0; WS_Y=5*MB; WS_WQ=10*MB; WS_WO=16*MB; WS_X1=18*MB; WS_X2=23*MB; WS_X3=WS_X1
WS_XN=[33*MB,33*MB]; WS_O=[43*MB,43*MB]
WS_PART=53*MB; PART_STRIDE=8448; PART_LAYER=32*8*PART_STRIDE
WS_FLAG=58*MB; WS_TS=60*MB; WS_SIZE=64*MB
F_P0,F_CONV,F_E0,F_E1,F_KA0,F_KA1,F_KB0,F_HELLO = range(8)
F_KV=16384
WS_NONCE=58*MB+32768
S_N0=6; S_N1=7
NAME='interleave_layers__ssm_conv_h3__linear_kernel_hedgehog__prompt'
SPIN_MAX=100000
LDS_TOTAL=163840
S_WS=8
S_A=12; S_B=16; S_C=20; S_D=28
S_DBG=24
S_WAVE=33; S_G=34; S_J=35; S_PURE=36; S_MASK=39; S_L2E=40; S_NL2E=41
STAMPS=False

def srd(k, s, lo, hi, size, off=0):
    if off:
        k(f's_add_u32 s{s}, s{lo}, {off}')
        k(f's_addc_u32 s{s+1}, s{hi}, 0')
    else:
        k(f's_mov_b32 s{s}, s{lo}')
        k(f's_mov_b32 s{s+1}, s{hi}')
    k(f's_mov_b32 s{s+2}, {size}')
    k(f's_mov_b32 s{s+3}, 0x20000')

def load_srd(k, s, arg, size):
    k(f's_load_dwordx2 s[{s}:{s+1}], s[0:1], {ARG[arg]}')
    k(f's_mov_b32 s{s+2}, {size}')
    k(f's_mov_b32 s{s+3}, 0x20000')

_uid=[0]
def uid(p):
    _uid[0]+=1
    return f'L{p}{_uid[0]}'

def lstores(k, lines):
    a,b=uid('st'),uid('sd')
    k(f's_cmp_eq_u32 s{S_PURE}, 0')
    k(f's_cbranch_scc1 {a}')
    for l in lines: k(l)
    k(f's_branch {b}')
    k(f'{a}:')
    for l in lines:
        if l.startswith('buffer_store'): k(l+' sc1')
        else: k(l)
    k(f'{b}:')

def flag_addr(k, arr, dst):
    if arr>=F_KV:
        k(f's_lshl_b32 {dst}, s{S_J}, 7')
        k(f's_lshl_b32 s43, s{S_G}, 3')
        off=WS_FLAG+arr
    else:
        k(f's_lshl_b32 {dst}, s{S_G}, 8')
        k(f's_lshl_b32 s43, s{S_J}, 3')
        off=WS_FLAG+arr*2048
    k(f's_add_u32 {dst}, {dst}, s43')
    k(f's_add_u32 {dst}, {dst}, {off}')

def set_flag(k, arr, local, vt=230, lo=None):
    skip=uid('pb')
    k(f's_cmp_lg_u32 s{S_WAVE}, 0')
    k(f's_cbranch_scc1 {skip}')
    flag_addr(k, arr, 's42')
    k(f'v_mov_b32 v{vt}, s42')
    k(f'v_mov_b32 v{vt+2}, {lo or f"s{S_N0}"}')
    k(f'v_mov_b32 v{vt+3}, s{S_N1}')
    k('s_mov_b64 exec, 1')
    st=f'buffer_store_dwordx2 v[{vt+2}:{vt+3}], v{vt}, s[{S_WS}:{S_WS+3}], 0 offen'
    if local: lstores(k, [st])
    else: k(st+' sc1')
    k('s_mov_b64 exec, -1')
    k(f'{skip}:')

def publish(k, arr, local, vt=230):
    k('s_waitcnt vmcnt(0)')
    k('s_barrier')
    set_flag(k, arr, local, vt)

def poll(k, arr, kind, vt=200):
    done,pl=uid('wf'),uid('pl')
    k(f'v_and_b32 v{vt}, 63, v0')
    if kind=='group':
        k(f'v_and_b32 v{vt}, 31, v{vt}')
        k(f'v_lshlrev_b32 v{vt}, 3, v{vt}')
        k(f's_lshl_b32 s42, s{S_G}, 8')
        k(f's_add_u32 s42, s42, {WS_FLAG+arr*2048}')
    elif kind=='all':
        k(f'v_lshlrev_b32 v{vt}, 5, v{vt}')
        k(f's_mov_b32 s42, {WS_FLAG+arr*2048}')
    else:
        k(f'v_and_b32 v{vt}, 7, v{vt}')
        k(f'v_lshlrev_b32 v{vt}, 3, v{vt}')
        k(f's_lshl_b32 s42, s{S_J}, 7')
        k(f's_add_u32 s42, s42, {WS_FLAG+arr}')
    k(f'v_add_u32 v{vt}, s42, v{vt}')
    k('s_mov_b32 s43, 0')
    k(f'{pl}:')
    if kind=='all':
        k(f'buffer_load_dwordx4 v[{vt+2}:{vt+5}], v{vt}, s[{S_WS}:{S_WS+3}], 0 offen sc1')
        k(f'buffer_load_dwordx4 v[{vt+6}:{vt+9}], v{vt}, s[{S_WS}:{S_WS+3}], 0 offen offset:16 sc1')
    else:
        k(f'buffer_load_dwordx2 v[{vt+2}:{vt+3}], v{vt}, s[{S_WS}:{S_WS+3}], 0 offen sc1')
    k('s_add_u32 s43, s43, 1')
    k(f's_cmp_gt_u32 s43, {SPIN_MAX}')
    k(f's_cbranch_scc1 {done}')
    k('s_waitcnt vmcnt(0)')
    if kind=='all':
        for i in range(4):
            k(f'v_xor_b32 v{vt+2+2*i}, s{S_N0}, v{vt+2+2*i}')
            k(f'v_xor_b32 v{vt+3+2*i}, s{S_N1}, v{vt+3+2*i}')
        k(f'v_or3_b32 v{vt+2}, v{vt+2}, v{vt+3}, v{vt+4}')
        k(f'v_or3_b32 v{vt+5}, v{vt+5}, v{vt+6}, v{vt+7}')
        k(f'v_or3_b32 v{vt+8}, v{vt+8}, v{vt+9}, v{vt+2}')
        k(f'v_or_b32 v{vt+1}, v{vt+5}, v{vt+8}')
    else:
        k(f'v_and_b32 v{vt+1}, -16, v{vt+2}')
        k(f'v_xor_b32 v{vt+1}, s{S_N0}, v{vt+1}')
        k(f'v_xor_b32 v{vt+4}, s{S_N1}, v{vt+3}')
        k(f'v_or_b32 v{vt+1}, v{vt+1}, v{vt+4}')
    k(f'v_cmp_ne_u32 vcc, 0, v{vt+1}')
    k(f's_cbranch_vccnz {pl}')
    k(f'{done}:')
    k('s_waitcnt vmcnt(0)')

def wait_flags(k, arr, kind, pre=None, vt=200):
    other,join=uid('wo'),uid('wj')
    k(f's_cmp_lg_u32 s{S_WAVE}, 0')
    k(f's_cbranch_scc1 {other}')
    poll(k, arr, kind, vt)
    if pre:
        pre(); k(f's_branch {join}'); k(f'{other}:'); pre(); k(f'{join}:')
    else:
        k(f'{other}:')
    k('s_barrier')

class Stamper:
    def __init__(self, k):
        self.k=k; self.n=0; self.names=[]
    def __call__(self, nm):
        import mcommon, os
        if not mcommon.STAMPS: return
        if nm in ('ka kside','ka qside','ka reduced','p0 stored','conv start','join','e pre') and (nm in self.names or os.environ.get('FEW')): return
        i=self.n; self.n+=1; self.names.append(nm)
        assert i<32
        import os
        self.k('s_memtime s[96:97]' if os.environ.get('CYC') else 's_memrealtime s[96:97]')
        self.k('s_waitcnt lgkmcnt(0)')
        self.k(f's_mov_b32 s{64+i}, s96')
    def flush(self):
        import mcommon, os
        if not mcommon.STAMPS: return
        self('end')
        k=self.k
        k(f's_lshl_b32 s42, s2, 3')
        k(f's_add_u32 s42, s42, s{S_WAVE}')
        k(f's_lshl_b32 s42, s42, 7')
        k(f's_add_u32 s42, s42, {WS_TS}')
        k('v_mov_b32 v1, s42')
        k('s_mov_b64 exec, 1')
        for i in range(self.n):
            k(f'v_mov_b32 v2, s{64+i}')
            k(f'buffer_store_dword v2, v1, s[{S_WS}:{S_WS+3}], 0 offen offset:{4*i}')
        k('s_waitcnt vmcnt(0)')
        if os.environ.get('DBGOUT'):
            sel=[int(x) for x in os.environ['DBGOUT'].split(',')]
            z=uid('dbg')
            k(f's_or_b32 s42, s2, s{S_WAVE}')
            k('s_cmp_lg_u32 s42, 0')
            k(f's_cbranch_scc1 {z}')
            k('s_load_dwordx2 s[12:13], s[0:1], 88')
            k('s_mov_b32 s14, 256')
            k('s_mov_b32 s15, 0x20000')
            k('s_waitcnt lgkmcnt(0)')
            k('v_mov_b32 v1, 0')
            for n,i in enumerate(sel):
                k(f's_sub_u32 s42, s{64+i}, s64')
                k('v_mov_b32 v2, s42')
                k(f'buffer_store_dword v2, v1, s[12:15], 0 offen offset:{4*n}')
            k('s_waitcnt vmcnt(0)')
            k(f'{z}:')
        open('stamp_names.txt','w').write(repr(self.names))
```

```python
from asmlib import Kern
from track import Q
MB = 1<<20
ARG = dict(q=0,k=8,v=16,shift=24,ssmk=32,ssmd=40,x=48,wqkv=56,wphi=64,wo=72,out=80,dbg=88,ws=96)
UTS=4096+128; CS4=16384+128
CS8=UTS
GS=128*CS8
SZ_UT=1024*UTS; SZ_Y=256*CS4; SZ_X=128*CS8
WS_UT=0; WS_Y=5*MB; WS_WQ=10*MB; WS_WO=16*MB; WS_X1=0; WS_X2=23*MB; WS_X3=WS_X1
WS_XN=[33*MB,33*MB]; WS_O=[43*MB,43*MB]
WS_PART=53*MB; PART_STRIDE=8448; PART_LAYER=32*8*PART_STRIDE
WS_FLAG=58*MB; WS_TS=60*MB; WS_SIZE=64*MB
F_P0,F_CONV,F_E0,F_E1,F_KA0,F_KA1,F_KB0,F_HELLO = range(8)
F_KV=16384
WS_NONCE=58*MB+32768
S_N0=6; S_N1=7
NAME='interleave_layers__ssm_conv_h3__linear_kernel_hedgehog__prompt'
SPIN_MAX=100000
LDS_TOTAL=163840
S_WS=8
S_A=12; S_B=16; S_C=20; S_D=28
S_DBG=24
S_WAVE=33; S_G=34; S_J=35; S_PURE=36; S_MASK=39; S_L2E=40; S_NL2E=41
STAMPS=False

def srd(k, s, lo, hi, size, off=0):
    if off:
        k(f's_add_u32 s{s}, s{lo}, {off}')
        k(f's_addc_u32 s{s+1}, s{hi}, 0')
    else:
        k(f's_mov_b32 s{s}, s{lo}')
        k(f's_mov_b32 s{s+1}, s{hi}')
    k(f's_mov_b32 s{s+2}, {size}')
    k(f's_mov_b32 s{s+3}, 0x20000')

def load_srd(k, s, arg, size):
    k(f's_load_dwordx2 s[{s}:{s+1}], s[0:1], {ARG[arg]}')
    k(f's_mov_b32 s{s+2}, {size}')
    k(f's_mov_b32 s{s+3}, 0x20000')

_uid=[0]
def uid(p):
    _uid[0]+=1
    return f'L{p}{_uid[0]}'

def lstores(k, lines):
    a,b=uid('st'),uid('sd')
    k(f's_cmp_eq_u32 s{S_PURE}, 0')
    k(f's_cbranch_scc1 {a}')
    for l in lines: k(l)
    k(f's_branch {b}')
    k(f'{a}:')
    for l in lines:
        if l.startswith('buffer_store'): k(l+' sc1')
        else: k(l)
    k(f'{b}:')

def flag_addr(k, arr, dst):
    if arr>=F_KV:
        k(f's_lshl_b32 {dst}, s{S_J}, 7')
        k(f's_lshl_b32 s43, s{S_G}, 3')
        off=WS_FLAG+arr
    else:
        k(f's_lshl_b32 {dst}, s{S_G}, 8')
        k(f's_lshl_b32 s43, s{S_J}, 3')
        off=WS_FLAG+arr*2048
    k(f's_add_u32 {dst}, {dst}, s43')
    k(f's_add_u32 {dst}, {dst}, {off}')

def set_flag(k, arr, local, vt=230, lo=None):
    skip=uid('pb')
    k(f's_cmp_lg_u32 s{S_WAVE}, 0')
    k(f's_cbranch_scc1 {skip}')
    flag_addr(k, arr, 's42')
    k(f'v_mov_b32 v{vt}, s42')
    k(f'v_mov_b32 v{vt+2}, {lo or f"s{S_N0}"}')
    k(f'v_mov_b32 v{vt+3}, s{S_N1}')
    k('s_mov_b64 exec, 1')
    st=f'buffer_store_dwordx2 v[{vt+2}:{vt+3}], v{vt}, s[{S_WS}:{S_WS+3}], 0 offen'
    if local: lstores(k, [st])
    else: k(st+' sc1')
    k('s_mov_b64 exec, -1')
    k(f'{skip}:')

def publish(k, arr, local, vt=230):
    k('s_waitcnt vmcnt(0)')
    k('s_barrier')
    set_flag(k, arr, local, vt)

def poll(k, arr, kind, vt=200):
    done,pl=uid('wf'),uid('pl')
    k(f'v_and_b32 v{vt}, 63, v0')
    if kind=='group':
        k(f'v_and_b32 v{vt}, 31, v{vt}')
        k(f'v_lshlrev_b32 v{vt}, 3, v{vt}')
        k(f's_lshl_b32 s42, s{S_G}, 8')
        k(f's_add_u32 s42, s42, {WS_FLAG+arr*2048}')
    elif kind=='all':
        k(f'v_lshlrev_b32 v{vt}, 5, v{vt}')
        k(f's_mov_b32 s42, {WS_FLAG+arr*2048}')
    else:
        k(f'v_and_b32 v{vt}, 7, v{vt}')
        k(f'v_lshlrev_b32 v{vt}, 3, v{vt}')
        k(f's_lshl_b32 s42, s{S_J}, 7')
        k(f's_add_u32 s42, s42, {WS_FLAG+arr}')
    k(f'v_add_u32 v{vt}, s42, v{vt}')
    k('s_mov_b32 s43, 0')
    k(f'{pl}:')
    if kind=='all':
        k(f'buffer_load_dwordx4 v[{vt+2}:{vt+5}], v{vt}, s[{S_WS}:{S_WS+3}], 0 offen sc1')
        k(f'buffer_load_dwordx4 v[{vt+6}:{vt+9}], v{vt}, s[{S_WS}:{S_WS+3}], 0 offen offset:16 sc1')
    else:
        k(f'buffer_load_dwordx2 v[{vt+2}:{vt+3}], v{vt}, s[{S_WS}:{S_WS+3}], 0 offen sc1')
    k('s_add_u32 s43, s43, 1')
    k(f's_cmp_gt_u32 s43, {SPIN_MAX}')
    k(f's_cbranch_scc1 {done}')
    k('s_waitcnt vmcnt(0)')
    if kind=='all':
        for i in range(4):
            k(f'v_xor_b32 v{vt+2+2*i}, s{S_N0}, v{vt+2+2*i}')
            k(f'v_xor_b32 v{vt+3+2*i}, s{S_N1}, v{vt+3+2*i}')
        k(f'v_or3_b32 v{vt+2}, v{vt+2}, v{vt+3}, v{vt+4}')
        k(f'v_or3_b32 v{vt+5}, v{vt+5}, v{vt+6}, v{vt+7}')
        k(f'v_or3_b32 v{vt+8}, v{vt+8}, v{vt+9}, v{vt+2}')
        k(f'v_or_b32 v{vt+1}, v{vt+5}, v{vt+8}')
    else:
        k(f'v_and_b32 v{vt+1}, -16, v{vt+2}')
        k(f'v_xor_b32 v{vt+1}, s{S_N0}, v{vt+1}')
        k(f'v_xor_b32 v{vt+4}, s{S_N1}, v{vt+3}')
        k(f'v_or_b32 v{vt+1}, v{vt+1}, v{vt+4}')
    k(f'v_cmp_ne_u32 vcc, 0, v{vt+1}')
    k(f's_cbranch_vccnz {pl}')
    k(f'{done}:')
    k('s_waitcnt vmcnt(0)')

def wait_flags(k, arr, kind, pre=None, vt=200):
    other,join=uid('wo'),uid('wj')
    k(f's_cmp_lg_u32 s{S_WAVE}, 0')
    k(f's_cbranch_scc1 {other}')
    poll(k, arr, kind, vt)
    if pre:
        pre(); k(f's_branch {join}'); k(f'{other}:'); pre(); k(f'{join}:')
    else:
        k(f'{other}:')
    k('s_barrier')

class Stamper:
    def __init__(self, k):
        self.k=k; self.n=0; self.names=[]
    def __call__(self, nm):
        import mcommon, os
        if not mcommon.STAMPS: return
        if nm in ('ka kside','ka qside','ka reduced','p0 stored','conv start','join','e pre') and (nm in self.names or os.environ.get('FEW')): return
        i=self.n; self.n+=1; self.names.append(nm)
        assert i<32
        import os
        self.k('s_memtime s[96:97]' if os.environ.get('CYC') else 's_memrealtime s[96:97]')
        self.k('s_waitcnt lgkmcnt(0)')
        self.k(f's_mov_b32 s{64+i}, s96')
    def flush(self):
        import mcommon, os
        if not mcommon.STAMPS: return
        self('end')
        k=self.k
        k(f's_lshl_b32 s42, s2, 3')
        k(f's_add_u32 s42, s42, s{S_WAVE}')
        k(f's_lshl_b32 s42, s42, 7')
        k(f's_add_u32 s42, s42, {WS_TS}')
        k('v_mov_b32 v1, s42')
        k('s_mov_b64 exec, 1')
        for i in range(self.n):
            k(f'v_mov_b32 v2, s{64+i}')
            k(f'buffer_store_dword v2, v1, s[{S_WS}:{S_WS+3}], 0 offen offset:{4*i}')
        k('s_waitcnt vmcnt(0)')
        if os.environ.get('DBGOUT'):
            sel=[int(x) for x in os.environ['DBGOUT'].split(',')]
            z=uid('dbg')
            k(f's_or_b32 s42, s2, s{S_WAVE}')
            k('s_cmp_lg_u32 s42, 0')
            k(f's_cbranch_scc1 {z}')
            k('s_load_dwordx2 s[12:13], s[0:1], 88')
            k('s_mov_b32 s14, 256')
            k('s_mov_b32 s15, 0x20000')
            k('s_waitcnt lgkmcnt(0)')
            k('v_mov_b32 v1, 0')
            for n,i in enumerate(sel):
                k(f's_sub_u32 s42, s{64+i}, s64')
                k('v_mov_b32 v2, s42')
                k(f'buffer_store_dword v2, v1, s[12:15], 0 offen offset:{4*n}')
            k('s_waitcnt vmcnt(0)')
            k(f'{z}:')
        open('stamp_names.txt','w').write(repr(self.names))
```

```python
import sys
sys.path.insert(0,'gen')
import mcommon
from mcommon import *
from ka import softmax_pair as _sp_unused
WS=f's[{S_WS}:{S_WS+3}]'
import os
EXP=os.environ.get('EXP','')
WFL=os.environ.get('WFL','nt')

def touch(k, first_wave, specs):
    for i,f in enumerate(specs):
        z=uid('tc')
        k(f's_cmp_lg_u32 s{S_WAVE}, {first_wave+i}')
        k(f's_cbranch_scc1 {z}')
        k('v_and_b32 v239, 63, v0')
        f()
        k(f'buffer_load_dword v239, v238, {WS}, 0 offen sc1')
        k(f'{z}:')
def touch_rows16(k, base, row_off_sgpr_lines):
    k(f's_mul_i32 s42, s{S_G}, {GS}')
    row_off_sgpr_lines()
    k('s_add_u32 s42, s42, s43')
    k(f's_mul_i32 s43, s{S_WAVE}, {16*CS8}')
    k('s_add_u32 s42, s42, s43')
    k(f's_add_u32 s42, s42, {base}')
    k('v_and_b32 v239, 15, v0')
    k(f'v_mul_u32_u24 v238, {CS8}, v239')
    k('v_add_u32 v238, s42, v238')
    k('s_mov_b64 exec, 0xffff')
    k(f'buffer_load_dword v239, v238, {WS}, 0 offen sc1')
    k('s_mov_b64 exec, -1')
def touch_w(k, off):
    if 'nowtouch' in EXP:
        k(f'buffer_load_dword v239, v238, {WS}, 0 offen sc1'); return
    k(f's_mul_i32 s42, s{S_J}, 196608')
    k(f's_lshl_b32 s43, s{S_WAVE}, 13')
    k('s_add_u32 s42, s42, s43')
    k(f's_add_u32 s42, s42, {WS_WQ+off}')
    k('v_and_b32 v239, 63, v0')
    k('v_lshl_add_u32 v238, v239, 7, s42')
    k(f'buffer_load_dword v239, v238, {WS}, 0 offen sc1')
def t_rows8(k, base, half):
    def f():
        k(f's_mul_i32 s42, s{S_G}, {GS}')
        k(f's_lshl_b32 s43, s{S_J}, 7')
        k('s_add_u32 s42, s42, s43')
        k(f's_add_u32 s42, s42, {base+half*64*CS8}')
        k(f'v_mul_u32_u24 v238, {CS8}, v239')
        k('v_add_u32 v238, s42, v238')
    return f
def t_o(k, base, half):
    def f():
        k(f's_mul_i32 s42, s{S_J}, {4*CS8}')
        k(f's_mul_i32 s43, s{S_G}, {GS}')
        k('s_add_u32 s42, s42, s43')
        k(f's_add_u32 s42, s42, {base+half*2*CS8}')
        k('v_lshrrev_b32 v238, 5, v239')
        k(f'v_mul_u32_u24 v238, {CS8}, v238')
        k('v_and_b32 v239, 31, v239')
        k('v_lshl_add_u32 v238, v239, 7, v238')
        k('v_add_u32 v238, s42, v238')
    return f
def t_x2(k, base, half):
    def f():
        k(f's_lshr_b32 s42, s{S_J}, 1')
        k(f's_mul_i32 s42, s42, {8*CS8}')
        k(f's_and_b32 s43, s{S_J}, 1')
        k('s_lshl_b32 s43, s43, 11')
        k('s_add_u32 s42, s42, s43')
        k(f's_mul_i32 s43, s{S_G}, {GS}')
        k('s_add_u32 s42, s42, s43')
        k(f's_add_u32 s42, s42, {base+half*4*CS8}')
        k('v_lshrrev_b32 v238, 4, v239')
        k(f'v_mul_u32_u24 v238, {CS8}, v238')
        k('v_and_b32 v239, 15, v239')
        k('v_lshl_add_u32 v238, v239, 7, v238')
        k('v_add_u32 v238, s42, v238')
    return f
def t_ut(k, half):
    def f():
        k(f's_lshl_b32 s42, s{S_G}, 7')
        k(f's_add_u32 s42, s42, {64*half}')
        k(f's_mul_i32 s42, s42, {UTS}')
        k(f's_lshl_b32 s43, s{S_J}, 7')
        k('s_add_u32 s42, s42, s43')
        k(f's_add_u32 s42, s42, {WS_UT}')
        k(f'v_mul_u32_u24 v238, {UTS}, v239')
        k('v_add_u32 v238, s42, v238')
    return f

KT=84992; VT=KT+17408; US=VT+16384
def phase_init_p0(k, ts):
    k(f"""
    s_load_dwordx2 s[4:5], s[0:1], {ARG['ws']}
    s_load_dwordx2 s[{S_A}:{S_A+1}], s[0:1], {ARG['k']}
    s_load_dwordx2 s[{S_B}:{S_B+1}], s[0:1], {ARG['v']}
    s_load_dwordx2 s[{S_C}:{S_C+1}], s[0:1], {ARG['shift']}
    s_load_dwordx2 s[{S_D}:{S_D+1}], s[0:1], {ARG['ssmk']}
    s_getreg_b32 s37, hwreg(HW_REG_XCC_ID, 0, 4)
    v_and_b32 v1, 63, v0
    v_lshrrev_b32 v2, 6, v0
    s_and_b32 s{S_G}, s2, 7
    s_lshr_b32 s{S_J}, s2, 3
    v_readfirstlane_b32 s{S_WAVE}, v2
    s_mov_b32 s{S_MASK}, 0xffff0000
    s_mov_b32 s{S_L2E}, 0x3fb8aa3b
    s_mov_b32 s{S_NL2E}, 0xbfb8aa3b
    s_mov_b32 s{S_A+2}, {4*MB}
    s_mov_b32 s{S_A+3}, 0x20000
    s_mov_b32 s{S_B+2}, {4*MB}
    s_mov_b32 s{S_B+3}, 0x20000
    s_mov_b32 s{S_C+2}, 8192
    s_mov_b32 s{S_C+3}, 0x20000
    s_mov_b32 s{S_D+2}, {4*MB}
    s_mov_b32 s{S_D+3}, 0x20000
    """)
    k(f"""
    v_lshrrev_b32 v3, 4, v1
    v_and_b32 v4, 15, v1
    s_lshl_b32 s48, s{S_J}, 6
    s_lshl_b32 s49, s{S_WAVE}, 2
    s_add_u32 s48, s48, s49
    v_add_u32 v5, s48, v3
    v_lshlrev_b32 v5, 11, v5
    s_lshl_b32 s49, s{S_G}, 8
    v_lshl_add_u32 v6, v4, 4, s49
    v_add_u32 v5, v5, v6
    v_subrev_u32 v6, {3*2048}, v5
    v_add_u32 v7, {32*2048}, v6
    v_add_u32 v8, {64*2048}, v6
    s_lshl_b32 s50, s{S_WAVE}, 10
    s_waitcnt lgkmcnt(0)
    """)
    srd(k, S_WS, 4, 5, WS_SIZE)
    ts('start')
    if 'codepf' in EXP:
        z=uid('cpf')
        k(f'''
        s_cmp_lg_u32 s{S_WAVE}, 7
        s_cbranch_scc1 {z}
        s_getpc_b64 s[42:43]
        s_and_b32 s42, s42, 0xffffff00
        s_lshl_b32 s44, s{S_J}, 11
        v_and_b32 v238, 15, v1
        v_lshl_add_u32 v238, v238, 7, s44
        global_load_dword v239, v238, s[42:43]
        {z}:
        ''')
    k(f's_add_u32 s42, s4, {WS_NONCE}')
    k('s_addc_u32 s43, s5, 0')
    k(f's_load_dwordx2 s[{S_N0}:{S_N1}], s[42:43], 0')
    z=uid('k17')
    k(f"""
    s_add_u32 m0, s50, {KT}
    s_mov_b32 s51, {32*2048}
    buffer_load_dwordx4 v6, s[{S_A}:{S_A+3}], 0 offen lds
    s_add_u32 m0, s50, {VT}
    s_nop 0
    buffer_load_dwordx4 v5, s[{S_B}:{S_B+3}], 0 offen lds
    s_add_u32 m0, s50, {KT+8192}
    s_nop 0
    buffer_load_dwordx4 v7, s[{S_A}:{S_A+3}], 0 offen lds
    s_add_u32 m0, s50, {VT+8192}
    s_nop 0
    buffer_load_dwordx4 v5, s[{S_B}:{S_B+3}], s51 offen lds
    s_cmp_lg_u32 s{S_WAVE}, 0
    s_cbranch_scc1 {z}
    s_mov_b32 m0, {KT+16384}
    s_nop 0
    buffer_load_dwordx4 v8, s[{S_A}:{S_A+3}], 0 offen lds
    {z}:
    """)
    k(f"""
    v_and_b32 v55, 31, v1
    v_lshrrev_b32 v56, 5, v1
    s_lshl_b32 s49, s{S_G}, 10
    v_lshl_add_u32 v9, v55, 5, s49
    buffer_load_dwordx4 v[42:45], v9, s[{S_C}:{S_C+3}], 0 offen
    buffer_load_dwordx4 v[46:49], v9, s[{S_C}:{S_C+3}], 0 offen offset:16
    """)
    if 'noutouch' not in EXP: touch_rows16(k, WS_UT, lambda: k(f's_lshl_b32 s43, s{S_J}, 7'))
    k('s_waitcnt lgkmcnt(0)')
    k(f's_add_u32 s{S_N0}, s{S_N0}, 16')
    k(f's_and_b32 s{S_N0}, s{S_N0}, -16')
    k(f's_add_u32 s{S_N1}, s{S_N1}, 1')
    k(f's_or_b32 s45, s{S_N0}, s37')
    set_flag(k, F_HELLO, False, lo='s45')
    k('v_lshlrev_b32 v58, 2, v56')
    k('v_sub_u32 v58, v55, v58')
    k('v_mov_b32 v60, 0x3f80')
    k('v_mov_b32 v61, 0x3f800000')
    for i in range(2):
        for p in range(4):
            c0 = 16*i + 8*(p>>1) + 2*(p&1)
            r = 248+4*i+p
            k(f'v_cmp_eq_u32 vcc, {c0}, v58')
            k(f'v_cmp_eq_u32 s[42:43], {c0+1}, v58')
            k(f'v_cndmask_b32 v{r}, 0, v60, vcc')
            k(f'v_cndmask_b32 v59, 0, v61, s[42:43]')
            k(f'v_or_b32 v{r}, v{r}, v59')
    k(f"""
    s_lshl_b32 s48, s{S_WAVE}, 11
    v_lshlrev_b32 v10, 10, v56
    v_lshl_add_u32 v10, v55, 3, v10
    v_add_u32 v10, s48, v10
    v_add_u32 v11, {VT}, v10
    v_add_u32 v10, {KT}, v10
    s_waitcnt vmcnt({0 if 'noutouch' in EXP else 1})
    s_barrier
    """)
    ts('p0 loaded')
    k(f"""
    v_and_b32 v230, 31, v1
    v_lshlrev_b32 v230, 3, v230
    s_lshl_b32 s42, s{S_G}, 8
    s_add_u32 s42, s42, {WS_FLAG+F_HELLO*2048}
    v_add_u32 v230, s42, v230
    buffer_load_dwordx2 v[232:233], v230, {WS}, 0 offen sc1
    """)
    k(f"""
    s_and_b32 s51, s{S_WAVE}, 3
    s_lshr_b32 s52, s{S_WAVE}, 2
    s_lshl_b32 s53, s{S_G}, 7
    s_lshl_b32 s54, s{S_J}, 2
    s_add_u32 s53, s53, s54
    s_add_u32 s53, s53, s51
    s_lshl_b32 s54, s53, 12
    s_lshl_b32 s55, s52, 11
    s_add_u32 s55, s55, s54
    v_lshlrev_b32 v50, 5, v1
    v_add_u32 v51, s55, v50
    v_subrev_u32 v52, 8, v51
    v_or_b32 v53, s52, v1
    v_cmp_eq_u32 vcc, 0, v53
    v_mov_b32 v54, 0x7ffffff0
    v_cndmask_b32 v52, v52, v54, vcc
    buffer_load_dwordx2 v[220:221], v52, s[{S_D}:{S_D+3}], 0 offen
    buffer_load_dwordx4 v[222:225], v51, s[{S_D}:{S_D+3}], 0 offen
    buffer_load_dwordx4 v[226:229], v51, s[{S_D}:{S_D+3}], 0 offen offset:16
    """)
    for i in range(7): k(f'ds_read_b64 v[{20+2*i}:{21+2*i}], v10 offset:{256*i}')
    for jj in range(4): k(f'ds_read_b64 v[{34+2*jj}:{35+2*jj}], v11 offset:{256*jj}')
    M=f's{S_MASK}'
    W = lambda c,t: 60+4*c+t
    for c in range(4):
        for h in range(2):
            src = 42+2*c+h
            k(f'v_lshlrev_b32 v{W(c,2*h)}, 16, v{src}')
            k(f'v_and_b32 v{W(c,2*h+1)}, {M}, v{src}')
    k('s_waitcnt lgkmcnt(0)')
    K = lambda i,c: 76+4*i+c
    V = lambda j,c: 104+4*j+c
    for i in range(7):
        for h in range(2):
            k(f'v_lshlrev_b32 v{K(i,2*h)}, 16, v{20+2*i+h}')
            k(f'v_and_b32 v{K(i,2*h+1)}, {M}, v{20+2*i+h}')
    for j in range(4):
        for h in range(2):
            k(f'v_lshlrev_b32 v{V(j,2*h)}, 16, v{34+2*j+h}')
            k(f'v_and_b32 v{V(j,2*h+1)}, {M}, v{34+2*j+h}')
    A = lambda j,c: 120+4*j+c
    P = lambda j,c: 136+4*j+c
    T = lambda j,h: 152+2*j+h
    def rnd(R):
        for j in range(4):
            for h in range(2):
                k(f'v_cvt_pk_bf16_f32 v{T(j,h)}, v{R(j,2*h)}, v{R(j,2*h+1)}')
        for j in range(4):
            for h in range(2):
                k(f'v_lshlrev_b32 v{R(j,2*h)}, 16, v{T(j,h)}')
                k(f'v_and_b32 v{R(j,2*h+1)}, {M}, v{T(j,h)}')
    for j in range(4):
        for c in range(4): k(f'v_mul_f32 v{A(j,c)}, v{K(j,c)}, v{W(c,3)}')
    rnd(A)
    for t in range(1,4):
        for j in range(4):
            for c in range(4): k(f'v_mul_f32 v{P(j,c)}, v{K(j+t,c)}, v{W(c,3-t)}')
        rnd(P)
        for j in range(4):
            for c in range(4): k(f'v_add_f32 v{A(j,c)}, v{A(j,c)}, v{P(j,c)}')
        rnd(A)
    for j in range(4):
        for c in range(4): k(f'v_mul_f32 v{A(j,c)}, v{A(j,c)}, v{V(j,c)}')
    for c in range(4):
        k(f'v_cvt_pk_bf16_f32 v{20+2*c}, v{A(0,c)}, v{A(1,c)}')
        k(f'v_cvt_pk_bf16_f32 v{21+2*c}, v{A(2,c)}, v{A(3,c)}')
    k(f"""
    v_and_b32 v12, 7, v55
    v_xor_b32 v12, s{S_WAVE}, v12
    v_lshlrev_b32 v12, 4, v12
    v_lshl_add_u32 v12, v56, 3, v12
    v_lshl_add_u32 v12, v55, 9, v12
    v_add_u32 v12, {US}, v12
    """)
    for c in range(4): k(f'ds_write_b64 v12, v[{20+2*c}:{21+2*c}] offset:{128*c}')
    ok=uid('hok')
    k(f"""
    s_waitcnt vmcnt(3)
    v_and_b32 v231, -16, v232
    v_xor_b32 v231, s{S_N0}, v231
    v_xor_b32 v234, s{S_N1}, v233
    v_or_b32 v231, v231, v234
    v_cmp_ne_u32 vcc, 0, v231
    s_cbranch_vccz {ok}
    """)
    poll(k, F_HELLO, 'group', vt=230)
    k(f"""
    {ok}:
    v_and_b32 v232, 15, v232
    v_cmp_ne_u32 vcc, s37, v232
    s_cmp_eq_u64 vcc, 0
    s_cselect_b32 s{S_PURE}, 1, 0
    v_and_b32 v13, 7, v0
    v_lshrrev_b32 v14, 3, v0
    v_bfe_u32 v15, v14, 2, 3
    v_xor_b32 v15, v15, v13
    v_lshlrev_b32 v15, 4, v15
    v_lshl_add_u32 v15, v14, 7, v15
    v_add_u32 v15, {US}, v15
    s_lshl_b32 s42, s{S_G}, 7
    v_add_u32 v16, s42, v14
    v_mul_u32_u24 v16, {UTS}, v16
    v_lshl_add_u32 v16, v13, 4, v16
    s_lshl_b32 s43, s{S_J}, 7
    v_add_u32 v16, s43, v16
    s_waitcnt lgkmcnt(0)
    s_barrier
    """)
    nst=uid('nst')
    k(f's_cmp_ge_u32 s{S_WAVE}, 4')
    k(f's_cbranch_scc1 {nst}')
    for u in range(4): k(f'ds_read_b128 v[{20+4*u}:{23+4*u}], v15 offset:{4096*u}')
    k('s_waitcnt lgkmcnt(0)')
    ls=[]
    for u in range(4):
        ls += [f's_mov_b32 s42, {WS_UT+32*u*UTS}', f'buffer_store_dwordx4 v[{20+4*u}:{23+4*u}], v16, {WS}, s42 offen']
    lstores(k, ls)
    k('s_waitcnt vmcnt(0)')
    k(f'{nst}:')
    ts('p0 stored')

ACH=16640; ACP=4160; UB=4*ACH; UCH=4608; PREP_LDS=UB+4*UCH
def phase_conv(k, ts):
    k('s_barrier')
    set_flag(k, F_P0, True)
    ts('p0 published')
    k(f'''
    s_mul_i32 s45, s51, {ACH}
    v_mov_b32 v20, 0
    v_mov_b32 v21, 0
    v_lshrrev_b32 v22, 4, v1
    v_mul_u32_u24 v22, {ACP}, v22
    v_and_b32 v23, 15, v1
    v_lshl_add_u32 v22, v23, 2, v22
    v_add_u32 v22, s45, v22
    ds_write_b32 v22, v20
    s_mul_i32 s46, s51, {UCH}
    s_add_u32 s46, s46, {UB}
    s_lshl_b32 s47, s52, 8
    s_add_u32 s47, s47, s46
    v_lshl_add_u32 v22, v1, 2, s47
    ds_write_b32 v22, v20
    s_lshl_b32 s47, s52, 11
    s_add_u32 s47, s47, s45
    s_add_u32 s47, s47, 64
    v_lshlrev_b32 v24, 5, v1
    v_add_u32 v24, s47, v24
    ''')
    F=26; G=34; H=44; T0=220
    k('s_waitcnt vmcnt(0)')
    for i in range(8): k(f'v_mov_b32 v{F+i}, v{T0+1+i}')
    for i in range(9): k(f'v_alignbit_b32 v{G+i}, v{T0+1+i}, v{T0+i}, 16')
    for i in range(8): k(f'v_alignbit_b32 v{H+i}, v{T0+2+i}, v{T0+1+i}, 16')
    k(f'''
    ds_write_b128 v24, v[{T0+2}:{T0+5}]
    ds_write_b128 v24, v[{T0+6}:{T0+9}] offset:16
    ds_write_b128 v24, v[{H}:{H+3}] offset:{ACP}
    ds_write_b128 v24, v[{H+4}:{H+7}] offset:{ACP+16}
    ds_write_b128 v24, v[{F}:{F+3}] offset:{2*ACP}
    ds_write_b128 v24, v[{F+4}:{F+7}] offset:{2*ACP+16}
    ds_write_b128 v24, v[{G}:{G+3}] offset:{3*ACP}
    ds_write_b128 v24, v[{G+4}:{G+7}] offset:{3*ACP+16}
    ''')
    k(f'''
    s_load_dwordx2 s[42:43], s[0:1], {ARG['ssmd']}
    s_lshr_b32 s44, s53, 1
    s_lshl_b32 s44, s44, 2
    s_waitcnt lgkmcnt(0)
    s_load_dword s38, s[42:43], s44
    ''')
    prep,join=uid('prep'),uid('join')
    nw=uid('nw'); wo,wl=uid('wo'),uid('wl')
    k(f"""
    s_cmp_lt_u32 s{S_WAVE}, 4
    s_cbranch_scc1 {nw}
    s_load_dwordx2 s[{S_A}:{S_A+1}], s[0:1], {ARG['wqkv']}
    s_load_dwordx2 s[{S_B}:{S_B+1}], s[0:1], {ARG['wo']}
    s_mov_b32 s{S_A+2}, {6*MB}
    s_mov_b32 s{S_B+2}, {2*MB}
    s_lshl_b32 s54, s{S_G}, 5
    s_add_u32 s54, s54, s{S_J}
    s_lshl_b32 s54, s54, 2
    s_add_u32 s54, s54, s51
    s_waitcnt lgkmcnt(0)
    s_cmp_ge_u32 s54, 768
    s_cbranch_scc1 {wo}
    s_mul_i32 s55, s54, 43691
    s_lshr_b32 s55, s55, 18
    s_mul_i32 s56, s55, 6
    s_sub_u32 s56, s54, s56
    s_mul_i32 s57, s55, {8*6144}
    s_lshl_b32 s58, s56, 10
    s_add_u32 s57, s57, s58
    v_lshl_add_u32 v3, v1, 4, s57
    """)
    for jj in range(8):
        k(f's_mov_b32 s59, {jj*6144}')
        k(f'buffer_load_dwordx4 v[{168+4*jj}:{171+4*jj}], v3, s[{S_A}:{S_A+3}], s59 offen {WFL}')
    k(f"""
    s_branch {nw}
    {wo}:
    s_sub_u32 s57, s54, 768
    s_lshr_b32 s55, s57, 1
    s_and_b32 s56, s57, 1
    s_mul_i32 s57, s55, {8*2048}
    s_lshl_b32 s58, s56, 10
    s_add_u32 s57, s57, s58
    v_lshl_add_u32 v3, v1, 4, s57
    """)
    for jj in range(8):
        k(f's_mov_b32 s59, {jj*2048}')
        k(f'buffer_load_dwordx4 v[{168+4*jj}:{171+4*jj}], v3, s[{S_B}:{S_B+3}], s59 offen {WFL}')
    k(f'{nw}:')
    wait_flags(k, F_P0, 'group')
    ts('p0 waited')
    nu=uid('nu')
    k(f"""
    s_load_dwordx2 s[{S_C}:{S_C+1}], s[0:1], {ARG['q']}
    s_mov_b32 s{S_C+2}, {4*MB}
    v_and_b32 v10, 7, v0
    v_lshrrev_b32 v11, 3, v0
    s_lshl_b32 s42, s{S_G}, 8
    s_lshl_b32 s43, s{S_J}, 3
    s_add_u32 s42, s42, s43
    v_add_u32 v10, s42, v10
    v_lshlrev_b32 v10, 11, v10
    v_lshl_add_u32 v10, v11, 4, v10
    s_cmp_ge_u32 s{S_WAVE}, 4
    s_cbranch_scc1 {nu}
    s_mul_i32 s44, s53, {UTS}
    s_add_u32 s44, s44, {WS_UT}
    v_lshl_add_u32 v8, v1, 4, s44
    s_add_u32 m0, s46, 512
    s_nop 0
    buffer_load_dwordx4 v8, {WS}, 0 offen lds
    buffer_load_dwordx4 v8, {WS}, 0 offen offset:1024 lds
    buffer_load_dwordx4 v8, {WS}, 0 offen offset:2048 lds
    buffer_load_dwordx4 v8, {WS}, 0 offen offset:3072 lds
    s_waitcnt vmcnt(0)
    {nu}:
    s_waitcnt lgkmcnt(0)
    s_barrier
    buffer_load_dwordx4 v[160:163], v10, s[{S_C}:{S_C+3}], 0 offen
    buffer_load_dwordx4 v[164:167], v10, s[{S_C}:{S_C+3}], 0 offen offset:1024
    """)
    k(f"""
    s_cmp_ge_u32 s{S_WAVE}, 4
    s_cbranch_scc1 {prep}
    """)
    ts('conv start')
    k(f'''
    v_lshrrev_b32 v3, 4, v1
    v_bfe_u32 v6, v1, 2, 2
    v_and_b32 v7, 3, v1
    v_mul_u32_u24 v8, {ACP}, v6
    v_lshlrev_b32 v9, 4, v3
    v_sub_u32 v8, v8, v9
    v_lshl_add_u32 v8, v7, 3, v8
    s_add_u32 s47, s45, 88
    v_add_u32 v2, s47, v8
    v_and_b32 v4, 15, v1
    v_lshlrev_b32 v8, 5, v4
    v_lshl_add_u32 v8, v3, 4, v8
    s_add_u32 s47, s46, 32
    v_add_u32 v5, s47, v8
    ''')
    VA, VB = 2, 5
    ACC = lambda J: 8+4*J
    BF = lambda st,mu: 40+32*st+4*mu
    AF = lambda n: 104+4*(n%3)
    for i in range(32): k(f'v_mov_b32 v{8+i}, 0')
    lg = Q(k,'lgkmcnt',15)
    def rdB(rho, mu):
        m = 8*mu - rho
        r = BF(rho&1, mu)
        k(f'ds_read_b128 v[{r}:{r+3}], v{VB} offset:{64*(m+7)}'); lg.issue(('B',rho,mu))
    def rdA(n):
        rho,i = n//8, n%8
        kap = 8*i+rho; r = AF(n)
        k(f'ds_read_b64_tr_b16 v[{r}:{r+1}], v{VA} offset:{64*kap+8}'); lg.issue(('A',n))
        k(f'ds_read_b64_tr_b16 v[{r+2}:{r+3}], v{VA} offset:{64*kap}'); lg.issue(('A',n))
    rdA(0)
    for mu in range(8): rdB(0,mu)
    rdA(1)
    for rho in range(8):
        for i in range(8):
            n = 8*rho+i
            if n+2 < 64: rdA(n+2)
            if rho<7 and i<4:
                rdB(rho+1, 2*i); rdB(rho+1, 2*i+1)
            lg.wait(('A',n))
            for J in range(i,8):
                lg.wait(('B',rho,J-i))
                a=ACC(J)
                k(f'v_mfma_f32_16x16x32_bf16 v[{a}:{a+3}], v[{AF(n)}:{AF(n)+3}], v[{BF(rho&1,J-i)}:{BF(rho&1,J-i)+3}], v[{a}:{a+3}]')
    ts('conv main')
    M=f's{S_MASK}'
    k(f'''
    s_waitcnt lgkmcnt(0)
    s_and_b32 s48, s53, 1
    s_lshl_b32 s48, s48, 4
    s_lshr_b32 s38, s38, s48
    s_lshl_b32 s38, s38, 16
    v_lshlrev_b32 v6, 5, v4
    v_lshl_add_u32 v6, v3, 3, v6
    s_add_u32 s47, s46, 512
    v_add_u32 v6, s47, v6
    ''')
    for J in range(8): k(f'ds_read_b64 v[{40+2*J}:{41+2*J}], v6 offset:{512*J}')
    for p in range(16): k(f'v_cvt_pk_bf16_f32 v{56+p}, v{8+2*p}, v{9+2*p}')
    for p in range(16):
        k(f'v_lshlrev_b32 v{8+2*p}, 16, v{56+p}')
        k(f'v_and_b32 v{9+2*p}, {M}, v{56+p}')
    k('s_waitcnt lgkmcnt(0)')
    for i in range(16):
        k(f'v_lshlrev_b32 v{72+2*i}, 16, v{40+i}')
        k(f'v_and_b32 v{73+2*i}, {M}, v{40+i}')
    for i in range(32): k(f'v_mul_f32 v{72+i}, s38, v{72+i}')
    for i in range(16): k(f'v_cvt_pk_bf16_f32 v{40+i}, v{72+2*i}, v{73+2*i}')
    for i in range(16):
        k(f'v_lshlrev_b32 v{72+2*i}, 16, v{40+i}')
        k(f'v_and_b32 v{73+2*i}, {M}, v{40+i}')
    for i in range(32): k(f'v_add_f32 v{72+i}, v{8+i}, v{72+i}')
    for i in range(16): k(f'v_cvt_pk_bf16_f32 v{40+i}, v{72+2*i}, v{73+2*i}')
    for J in range(8): k(f'ds_write_b64 v6, v[{40+2*J}:{41+2*J}] offset:{512*J}')
    k(f's_branch {join}')
    k(f'{prep}:')
    def transpose_store(dest, step):
        k('s_mov_b32 s60, 0x05040100')
        k('s_mov_b32 s61, 0x07060302')
        k('s_waitcnt vmcnt(0)')
        for m in range(8):
            for p in range(4):
                sel = 's61' if m&1 else 's60'
                k(f'v_perm_b32 v{40+4*m+p}, v{168+4*(2*p+1)+(m>>1)}, v{168+4*(2*p)+(m>>1)}, {sel}')
        k(f's_lshl_b32 s42, s51, 13')
        k(f's_add_u32 s42, s42, {PREP_LDS}')
        k('v_and_b32 v5, 7, v1')
        k('v_lshlrev_b32 v6, 7, v1')
        k('v_add_u32 v6, s42, v6')
        for m in range(8):
            k(f'v_xor_b32 v7, {m}, v5')
            k(f'v_lshl_add_u32 v7, v7, 4, v6')
            k(f'ds_write_b128 v7, v[{40+4*m}:{43+4*m}]')
        k('v_lshrrev_b32 v5, 5, v1')
        k('v_bfe_u32 v6, v1, 3, 2')
        k('v_lshl_add_u32 v5, v5, 2, v6')
        k('v_and_b32 v6, 7, v1')
        k('v_xor_b32 v6, v6, v5')
        k('v_and_b32 v6, 7, v6')
        k('v_lshlrev_b32 v6, 4, v6')
        k('v_lshl_add_u32 v6, v5, 7, v6')
        k('v_add_u32 v6, s42, v6')
        k('s_waitcnt lgkmcnt(0)')
        for i in range(8):
            k(f'ds_read_b128 v[{8+4*i}:{11+4*i}], v6 offset:{i*1024}')
        dest()
        k('s_waitcnt lgkmcnt(0)')
        for i in range(8):
            k(f's_mov_b32 s42, {i*step}')
            k(f'buffer_store_dwordx4 v[{8+4*i}:{11+4*i}], v4, {WS}, s42 offen sc1')
    def dest_wq():
        k(f'''
        s_and_b32 s60, s56, 1
        s_lshl_b32 s60, s60, 4
        v_lshrrev_b32 v4, 5, v1
        v_add_u32 v4, s60, v4
        s_mov_b32 s61, 196608
        v_mul_lo_u32 v4, s61, v4
        s_lshr_b32 s62, s55, 1
        s_mul_i32 s62, s62, 3072
        s_lshr_b32 s63, s56, 1
        s_lshl_b32 s63, s63, 10
        s_add_u32 s62, s62, s63
        s_and_b32 s63, s55, 1
        s_lshl_b32 s63, s63, 9
        s_add_u32 s62, s62, s63
        s_add_u32 s62, s62, {WS_WQ}
        v_and_b32 v5, 31, v1
        v_lshl_add_u32 v4, v5, 4, v4
        v_add_u32 v4, s62, v4
        ''')
    wo2=uid('wo2')
    k(f's_cmp_ge_u32 s54, 768')
    k(f's_cbranch_scc1 {wo2}')
    transpose_store(dest_wq, 2*196608)
    k(f's_branch {join}')
    k(f'{wo2}:')
    def dest_wo():
        k(f'''
        s_lshl_b32 s60, s56, 20
        v_lshrrev_b32 v4, 5, v1
        v_lshlrev_b32 v4, 10, v4
        s_lshr_b32 s62, s55, 1
        s_lshl_b32 s62, s62, 11
        s_and_b32 s63, s55, 1
        s_lshl_b32 s63, s63, 9
        s_add_u32 s62, s62, s63
        s_add_u32 s62, s62, s60
        s_add_u32 s62, s62, {WS_WO}
        v_and_b32 v5, 31, v1
        v_lshl_add_u32 v4, v5, 4, v4
        v_add_u32 v4, s62, v4
        ''')
    transpose_store(dest_wo, 131072)
    k(f'{join}:')
    ts('join')
    k(f'''
    s_waitcnt lgkmcnt(0)
    s_barrier
    v_lshlrev_b32 v6, 2, v0
    v_add_u32 v6, {UB+512}, v6
    ''')
    for u in range(2):
        for ch in range(4): k(f'ds_read_b32 v{8+4*u+ch}, v6 offset:{ch*UCH+u*2048}')
    k(f'''
    s_mov_b32 s60, 0x05040100
    s_mov_b32 s61, 0x07060302
    s_lshl_b32 s54, s{S_G}, 5
    s_add_u32 s54, s54, s{S_J}
    s_mul_i32 s54, s54, {CS4}
    s_add_u32 s54, s54, {WS_Y}
    v_lshl_add_u32 v7, v0, 4, s54
    s_mov_b32 s55, 8192
    s_waitcnt lgkmcnt(0)
    ''')
    for u in range(2):
        b=8+4*u; o=16+4*u
        k(f'v_perm_b32 v{o}, v{b+1}, v{b}, s60')
        k(f'v_perm_b32 v{o+1}, v{b+3}, v{b+2}, s60')
        k(f'v_perm_b32 v{o+2}, v{b+1}, v{b}, s61')
        k(f'v_perm_b32 v{o+3}, v{b+3}, v{b+2}, s61')
    k(f'buffer_store_dwordx4 v[16:19], v7, {WS}, 0 offen sc1')
    k(f'buffer_store_dwordx4 v[20:23], v7, {WS}, s55 offen sc1')
    publish(k, F_CONV, False)
    ts('conv published')

E_LDS = LDS_TOTAL-2048
SLAB=24576; NSLOT=5
def ka_dma(k, slab, vm=None):
    k(f's_add_u32 m0, s57, {(slab%NSLOT)*SLAB}')
    k(f's_mov_b32 s44, {WS_WQ+slab*SLAB}')
    for t in range(3):
        k(f'buffer_load_dwordx4 v236, {WS}, s44 offen offset:{t*1024} lds')
        if vm: vm.issue(('dma',slab))
def ka_addr(k):
    k(f'''
    s_mul_i32 s56, s{S_J}, {0 if 'wsame' in EXP else 196608}
    s_mul_i32 s57, s{S_WAVE}, 3072
    s_add_u32 s56, s56, s57
    v_and_b32 v236, 63, v0
    v_lshl_add_u32 v236, v236, 4, s56
    ''')

def phase_e(k, ts, layer):
    M=f's{S_MASK}'
    first = layer==0
    xout = WS_X1 if first else WS_X3
    k(f'''
    v_and_b32 v1, 7, v0
    v_lshrrev_b32 v2, 3, v0
    s_lshl_b32 s42, s{S_G}, 8
    s_lshl_b32 s43, s{S_J}, 3
    s_add_u32 s42, s42, s43
    v_add_u32 v3, s42, v1
    v_lshrrev_b32 v4, 6, v0
    v_mul_u32_u24 v5, {CS8}, v2
    v_lshl_add_u32 v6, v1, 4, s43
    v_lshl_add_u32 v5, v6, 0, v5
    s_mul_i32 s44, s{S_G}, {GS}
    s_lshl_b32 s45, s{S_J}, 7
    s_add_u32 s44, s44, s45
    s_sub_u32 s44, s44, s43
    v_add_u32 v5, s44, v5
    v_mul_u32_u24 v7, {2*CS4}, v2
    v_lshl_add_u32 v7, v3, 3, v7
    v_lshlrev_b32 v96, 6, v1
    v_add_u32 v96, {E_LDS}, v96
    v_lshl_add_u32 v97, v4, 3, v96
    ''')
    X = lambda i: 24+i
    T = lambda i: 40+i
    P = lambda i: 56+i
    Yf = lambda i: 64+i
    def unpack(dst, src, n=8):
        for i in range(n):
            k(f'v_lshlrev_b32 v{dst(2*i)}, 16, v{src(i)}')
            k(f'v_and_b32 v{dst(2*i+1)}, {M}, v{src(i)}')
    def pack(dst, src, n=8):
        for i in range(n): k(f'v_cvt_pk_bf16_f32 v{dst(i)}, v{src(2*i)}, v{src(2*i+1)}')
    def stats(ldsoff):
        k(f'v_add_f32 v98, v{X(0)}, v{X(1)}')
        k(f'v_add_f32 v102, v{X(2)}, v{X(3)}')
        k(f'v_mul_f32 v99, v{X(0)}, v{X(0)}')
        k(f'v_mul_f32 v103, v{X(1)}, v{X(1)}')
        k(f'v_fmac_f32 v99, v{X(2)}, v{X(2)}')
        k(f'v_fmac_f32 v103, v{X(3)}, v{X(3)}')
        for i in range(4,16,2):
            k(f'v_add_f32 v98, v98, v{X(i)}')
            k(f'v_add_f32 v102, v102, v{X(i+1)}')
            k(f'v_fmac_f32 v99, v{X(i)}, v{X(i)}')
            k(f'v_fmac_f32 v103, v{X(i+1)}, v{X(i+1)}')
        k('''
        v_add_f32 v98, v98, v102
        v_add_f32 v99, v99, v103
        v_add_f32_dpp v98, v98, v98 row_ror:8 row_mask:0xf bank_mask:0xf
        v_add_f32_dpp v99, v99, v99 row_ror:8 row_mask:0xf bank_mask:0xf
        v_mov_b32 v102, v98
        v_mov_b32 v103, v99
        v_permlane16_swap_b32 v98, v102
        v_permlane16_swap_b32 v99, v103
        v_add_f32 v98, v98, v102
        v_add_f32 v99, v99, v103
        v_mov_b32 v102, v98
        v_mov_b32 v103, v99
        v_permlane32_swap_b32 v98, v102
        v_permlane32_swap_b32 v99, v103
        v_add_f32 v98, v98, v102
        v_add_f32 v99, v99, v103
        ''')
        k(f'ds_write_b64 v97, v[98:99] offset:{ldsoff}')
        k('s_waitcnt lgkmcnt(0)')
        k('s_barrier')
        for i in range(4): k(f'ds_read_b128 v[{104+4*i}:{107+4*i}], v96 offset:{ldsoff+16*i}')
        k('s_waitcnt lgkmcnt(0)')
        k(f'''
        v_add_f32 v104, v104, v106
        v_add_f32 v105, v105, v107
        v_add_f32 v108, v108, v110
        v_add_f32 v109, v109, v111
        v_add_f32 v112, v112, v114
        v_add_f32 v113, v113, v115
        v_add_f32 v116, v116, v118
        v_add_f32 v117, v117, v119
        v_add_f32 v104, v104, v108
        v_add_f32 v105, v105, v109
        v_add_f32 v112, v112, v116
        v_add_f32 v113, v113, v117
        v_add_f32 v104, v104, v112
        v_add_f32 v105, v105, v113
        v_mul_f32 v104, 0x3a800000, v104
        v_mul_f32 v105, 0x3a800000, v105
        v_fma_f32 v105, -v104, v104, v105
        v_max_f32 v105, 0, v105
        v_cvt_pk_bf16_f32 v106, v104, v105
        v_lshlrev_b32 v100, 16, v106
        v_and_b32 v105, {M}, v106
        v_add_f32 v105, 0x3727c5ac, v105
        v_cvt_pk_bf16_f32 v106, v105, v105
        v_and_b32 v105, {M}, v106
        v_sqrt_f32 v105, v105
        v_cvt_pk_bf16_f32 v106, v105, v105
        v_and_b32 v105, {M}, v106
        v_rcp_f32 v101, v105
        ''')
    def normalize():
        for i in range(16): k(f'v_sub_f32 v{T(i)}, v{X(i)}, v100')
        pack(P, T); unpack(T, P)
        for i in range(16): k(f'v_mul_f32 v{T(i)}, v{T(i)}, v101')
        pack(P, T)
    def yloads():
        k(f's_mov_b32 s42, {WS_Y}')
        k(f's_mov_b32 s43, {WS_Y+CS4}')
        k(f's_mov_b32 s44, {WS_Y+128*CS4}')
        k(f's_mov_b32 s45, {WS_Y+129*CS4}')
        for i in range(4):
            k(f'buffer_load_dwordx2 v[{16+2*i}:{17+2*i}], v7, {WS}, s{42+i} offen')
    ka_addr(k)
    if first:
        k(f'''
        s_load_dwordx2 s[{S_B}:{S_B+1}], s[0:1], {ARG['wphi']}
        s_mov_b32 s{S_B+2}, 65536
        v_and_b32 v121, 63, v0
        v_lshrrev_b32 v122, 5, v121
        v_and_b32 v121, 31, v121
        s_lshl_b32 s46, s{S_J}, 11
        v_lshlrev_b32 v120, 8, v122
        v_lshl_add_u32 v120, v121, 1, v120
        v_add_u32 v120, s46, v120
        ''')
        k('s_waitcnt lgkmcnt(0)')
        for i in range(2):
            for jj in range(8):
                d = 16*i + 8*(jj>>2) + (jj&3)
                k(f'buffer_load_ushort v{200+8*i+jj}, v120, s[{S_B}:{S_B+3}], 0 offen offset:{d*64}')
        unpack(X, lambda i: 160+i)
        stats(0)
        normalize()
        unpack(T, P)
        k('s_waitcnt vmcnt(0)')
        for i in range(2):
            for p in range(4):
                k(f'v_lshl_or_b32 v{240+4*i+p}, v{200+8*i+2*p+1}, 16, v{200+8*i+2*p}')
        ts('e pre')
        wait_flags(k, F_CONV, 'all')
        ts('e waited')
        yloads()
        touch_rows16(k, WS_XN[0], lambda: k(f's_lshl_b32 s43, s{S_J}, 7'))
        z=uid('nz')
        k(f'''
        s_or_b32 s42, s{S_G}, s{S_J}
        s_or_b32 s42, s42, s{S_WAVE}
        s_cmp_lg_u32 s42, 0
        s_cbranch_scc1 {z}
        v_mov_b32 v200, {WS_NONCE}
        v_mov_b32 v202, s{S_N0}
        v_mov_b32 v203, s{S_N1}
        s_mov_b64 exec, 1
        buffer_store_dwordx2 v[202:203], v200, {WS}, 0 offen sc1
        s_mov_b64 exec, -1
        s_waitcnt vmcnt(0)
        {z}:
        s_waitcnt vmcnt(1)
        ''')
    else:
        wait_flags(k, F_KB0, 'group', yloads)
        ts('e waited')
        k(f'''
        s_mov_b32 s42, {WS_X2}
        s_mov_b32 s43, {WS_X2+64*CS8}
        buffer_load_dwordx4 v[8:11], v5, {WS}, s42 offen
        buffer_load_dwordx4 v[12:15], v5, {WS}, s43 offen
        ''')
        touch_rows16(k, WS_XN[1], lambda: k(f's_lshl_b32 s43, s{S_J}, 7'))
        k('s_waitcnt vmcnt(1)')
        unpack(X, lambda i: 8+i)
        stats(0)
        normalize()
        unpack(T, P)
    unpack(Yf, lambda i: 16+i)
    for i in range(16): k(f'v_mul_f32 v{T(i)}, v{T(i)}, v{Yf(i)}')
    pack(P, T); unpack(T, P)
    for i in range(16): k(f'v_add_f32 v{X(i)}, v{X(i)}, v{T(i)}')
    XP = lambda i: 80+i
    pack(XP, X); unpack(X, XP)
    lstores(k, [f's_mov_b32 s42, {xout}', f's_mov_b32 s43, {xout+64*CS8}',
                f'buffer_store_dwordx4 v[80:83], v5, {WS}, s42 offen', f'buffer_store_dwordx4 v[84:87], v5, {WS}, s43 offen'])
    stats(512)
    normalize()
    lstores(k, [f's_mov_b32 s42, {WS_XN[layer]}', f's_mov_b32 s43, {WS_XN[layer]+64*CS8}',
                f'buffer_store_dwordx4 v[56:59], v5, {WS}, s42 offen', f'buffer_store_dwordx4 v[60:63], v5, {WS}, s43 offen'])
    publish(k, F_E0+layer, True)
    ts('e published')

RED_Z=65536; KVA=67584; ZA=71680
from ka import mfma
def softmax_pair(k, src, EP, EN, outP, outN, tmp):
    import ka
    ka.softmax_pair(k, src, EP, EN, outP, outN, tmp)

KB_BASE=[73728, 73728+32768, 0, 32768]
def kb_addr(k):
    k(f'''
    s_lshr_b32 s58, s{S_J}, 1
    s_and_b32 s59, s{S_WAVE}, 3
    s_lshr_b32 s60, s{S_WAVE}, 2
    s_lshl_b32 s61, s59, 12
    s_lshl_b32 s62, s60, 14
    s_add_u32 s61, s61, s62
    s_lshl_b32 s62, s59, 12
    s_lshl_b32 s63, s60, 16
    s_add_u32 s62, s62, s63
    s_mul_i32 s63, s58, {0 if 'wsame' in EXP else 131072}
    s_add_u32 s62, s62, s63
    v_and_b32 v237, 63, v0
    v_lshl_add_u32 v237, v237, 4, s62
    ''')
def kb_dma(k, s, vm=None):
    k(f's_add_u32 m0, s61, {KB_BASE[s]}')
    k(f's_mov_b32 s44, {WS_WO+s*16384}')
    for t in range(4):
        k(f'buffer_load_dwordx4 v237, {WS}, s44 offen offset:{t*1024} lds')
        if vm: vm.issue(('dma',s))

def phase_ka(k, ts, layer):
    vm = Q(k,'vmcnt',63); lg = Q(k,'lgkmcnt',15)
    k(f'''
    v_and_b32 v1, 63, v0
    v_and_b32 v5, 31, v1
    v_lshrrev_b32 v6, 5, v1
    s_mul_i32 s42, s{S_G}, {GS}
    s_lshl_b32 s43, s{S_WAVE}, 9
    s_add_u32 s42, s42, s43
    v_lshl_add_u32 v2, v5, 4, s42
    v_mul_u32_u24 v7, {CS8}, v6
    v_add_u32 v2, v2, v7
    v_lshlrev_b32 v3, 4, v1
    v_add_u32 v228, {2*SLAB}, v3
    v_add_u32 v229, {4*SLAB}, v3
    ''')
    ACQ, ACK, ACV = 8, 24, 40
    for i in range(48): k(f'v_mov_b32 v{8+i}, 0')
    early=uid('early')
    k(f'''
    s_sub_u32 s46, s{S_WAVE}, 1
    s_cmp_ge_u32 s46, 6
    s_cbranch_scc1 {early}
    s_lshl_b32 s46, s46, 12
    s_mul_i32 s47, s{S_J}, {0 if 'wsame' in EXP else 196608}
    s_add_u32 s47, s47, s46
    v_add_u32 v7, s47, v3
    ''')
    for sl in range(1):
        k(f's_add_u32 m0, s46, {sl*SLAB}')
        k(f's_mov_b32 s44, {WS_WQ+sl*SLAB}')
        for t in range(4): k(f'buffer_load_dwordx4 v7, {WS}, s44 offen offset:{t*1024} lds')
    k(f'{early}:')
    wait_flags(k, F_E0+layer, 'group')
    ts('ka waited')
    XD = 24
    XB = lambda s: 56+4*(s%XD)
    def xload(step):
        k(f's_mov_b32 s45, {(WS_XN[1-layer] if "xclean" in EXP else WS_XN[layer])+step*2*CS8}')
        k(f'buffer_load_dwordx4 v[{XB(step)}:{XB(step)+3}], v2, {WS}, s45 offen sc1')
        vm.issue(('x',step))
    WB = lambda st,t: 152+12*st+4*t
    def wread(step):
        slab, j = step//8, step%8
        st = step&1
        for t in range(3):
            sl = slab%NSLOT
            base = (3,3,228,228,229)[sl]; rel = (0,SLAB,0,SLAB,0)[sl]
            k(f'ds_read_b128 v[{WB(st,t)}:{WB(st,t)+3}], v{base} offset:{rel + j*3072 + t*1024}')
            lg.issue(('w',step))
    for s in range(4): xload(s)
    ka_dma(k, 1, vm)
    for s in range(4,8): xload(s)
    nx=[8]
    vm.wait(('x',0))
    k('s_barrier')
    ts('ka first')
    wread(0)
    for step in range(64):
        slab, j = step//8, step%8
        if step+1 < 64: wread(step+1)
        lg.wait(('w',step))
        vm.wait(('x',step))
        st = step&1; X = XB(step)
        if 'nomfma' not in EXP:
            mfma(k, ACQ, WB(st,0), X)
            mfma(k, ACK, WB(st,1), X)
            mfma(k, ACV, X, WB(st,2))
        for _ in range(3):
            if nx[0] < 64 and nx[0] <= step+XD and 'nox' not in EXP:
                xload(nx[0]); nx[0]+=1
        if step==1: ka_dma(k, 2, vm)
        if step==5: ka_dma(k, 3, vm)
        if step==44:
            touch(k, 0, [t_o(k,WS_O[layer],0), t_o(k,WS_O[layer],1)] + ([t_x2(k,WS_X2,0), t_x2(k,WS_X2,1)] if layer==0 else []))
        if j==3 and slab+1 < 8:
            vm.wait(('dma',slab+1))
            k('s_barrier')
            if slab+4 < 8 and 'nowdma' not in EXP: ka_dma(k, slab+4, vm)
    ts('ka main')
    vm.drain()
    k('s_barrier')
    kb_addr(k); kb_dma(k,0); kb_dma(k,1)
    QP = 212
    for p in range(8): k(f'v_cvt_pk_bf16_f32 v{QP+p}, v{8+2*p}, v{8+2*p+1}')
    KP, VP, PK, EP, EN = 56, 64, 72, 132, 148
    WP0, WP1, ID0, ID1 = 240, 244, 248, 252
    for p in range(8): k(f'v_cvt_pk_bf16_f32 v{KP+p}, v{ACK+2*p}, v{ACK+2*p+1}')
    mfma(k, PK, WP0, KP, 0)
    mfma(k, PK, WP1, KP+4)
    for p in range(8): k(f'v_cvt_pk_bf16_f32 v{VP+p}, v{ACV+2*p}, v{ACV+2*p+1}')
    for i in range(4): k(f'v_mov_b32 v{128+i}, 0x3f803f80')
    PHP, PHN, TMP = 88, 96, 104
    softmax_pair(k, PK, EP, EN, PHP, PHN, TMP)
    KVP, KVN, ZP, ZN = 164, 180, 196, 112
    T1, T2, PT1, PT2 = 132, 148, 72, 80
    mfma(k, T1, PHP, ID0, 0)
    mfma(k, T2, PHN, ID0, 0)
    mfma(k, T1, PHP+4, ID1)
    mfma(k, T2, PHN+4, ID1)
    for p in range(8): k(f'v_cvt_pk_bf16_f32 v{PT1+p}, v{T1+2*p}, v{T1+2*p+1}')
    for p in range(8): k(f'v_cvt_pk_bf16_f32 v{PT2+p}, v{T2+2*p}, v{T2+2*p+1}')
    mfma(k, KVP, PT1, VP, 0)
    mfma(k, ZP, PT1, 128, 0)
    mfma(k, KVN, PT2, VP, 0)
    mfma(k, ZN, PT2, 128, 0)
    mfma(k, KVP, PT1+4, VP+4)
    mfma(k, ZP, PT1+4, 128)
    mfma(k, KVN, PT2+4, VP+4)
    mfma(k, ZN, PT2+4, 128)
    ts('ka kside')
    k(f's_lshl_b32 s46, s{S_WAVE}, 13')
    k('v_add_u32 v7, s46, v3')
    for fz,base in enumerate((KVP,KVN)):
        for g in range(4):
            k(f'ds_write_b128 v7, v[{base+4*g}:{base+4*g+3}] offset:{(fz*4+g)*1024}')
    k(f'''
    s_lshl_b32 s46, s{S_WAVE}, 8
    s_add_u32 s46, s46, {RED_Z}
    v_lshlrev_b32 v7, 4, v6
    v_add_u32 v7, s46, v7
    s_mov_b32 exec_lo, 1
    s_mov_b32 exec_hi, 1
    ''')
    for fz,base in enumerate((ZP,ZN)):
        for g in range(4):
            k(f'ds_write_b128 v7, v[{base+4*g}:{base+4*g+3}] offset:{fz*128+g*32}')
    k('s_mov_b64 exec, -1')
    k('s_waitcnt lgkmcnt(0)')
    k('s_barrier')
    k(f's_lshl_b32 s46, s{S_WAVE}, 10')
    k('v_add_u32 v7, s46, v3')
    for w in range(8): k(f'ds_read_b128 v[{164+4*w}:{167+4*w}], v7 offset:{w*8192}')
    k(f'''
    v_and_b32 v9, 15, v1
    v_lshrrev_b32 v10, 1, v9
    v_lshlrev_b32 v10, 8, v10
    v_and_b32 v11, 1, v9
    v_lshl_add_u32 v10, v11, 4, v10
    s_lshl_b32 s46, s{S_WAVE}, 5
    s_add_u32 s46, s46, {RED_Z}
    v_add_u32 v10, s46, v10
    ds_read_b128 v[196:199], v10
    ''')
    PB = WS_PART+layer*PART_LAYER
    k(f'''
    s_lshl_b32 s47, s{S_J}, 3
    s_add_u32 s47, s47, s{S_G}
    s_mul_i32 s47, s47, {PART_STRIDE}
    s_add_u32 s47, s47, {PB}
    v_add_u32 v8, s47, v7
    ''')
    def sum8(base):
        for i in range(4):
            k(f'v_add_f32 v{base+i}, v{base+i}, v{base+4+i}')
            k(f'v_add_f32 v{base+8+i}, v{base+8+i}, v{base+12+i}')
            k(f'v_add_f32 v{base+16+i}, v{base+16+i}, v{base+20+i}')
            k(f'v_add_f32 v{base+24+i}, v{base+24+i}, v{base+28+i}')
        for i in range(4):
            k(f'v_add_f32 v{base+i}, v{base+i}, v{base+8+i}')
            k(f'v_add_f32 v{base+16+i}, v{base+16+i}, v{base+24+i}')
        for i in range(4):
            k(f'v_add_f32 v{base+i}, v{base+i}, v{base+16+i}')
    def lane_sum(base):
        for mod in ('quad_perm:[2,3,0,1]','row_ror:4','row_ror:8'):
            for i in range(4):
                k(f'v_add_f32_dpp v{base+i}, v{base+i}, v{base+i} {mod} row_mask:0xf bank_mask:0xf')
    k('s_waitcnt lgkmcnt(0)')
    sum8(164)
    k(f'''
    v_cvt_pk_bf16_f32 v164, v164, v165
    v_cvt_pk_bf16_f32 v165, v166, v167
    v_mov_b32 v166, s{S_N0}
    v_mov_b32 v167, s{S_N1}
    buffer_store_dwordx4 v[164:167], v8, {WS}, 0 offen sc1
    ''')
    lane_sum(196)
    k(f'''
    v_cvt_pk_bf16_f32 v196, v196, v197
    v_cvt_pk_bf16_f32 v197, v198, v199
    v_mov_b32 v198, s{S_N0}
    v_mov_b32 v199, s{S_N1}
    s_lshl_b32 s46, s{S_WAVE}, 5
    s_add_u32 s46, s46, s47
    s_add_u32 s46, s46, 8192
    v_lshl_add_u32 v9, v11, 4, s46
    s_mov_b64 exec, 3
    buffer_store_dwordx4 v[196:199], v9, {WS}, 0 offen sc1
    s_mov_b64 exec, -1
    ''')
    mfma(k, PK, WP0, QP, 0)
    mfma(k, PK, WP1, QP+4)
    QHP, QHN = 88, 96
    softmax_pair(k, PK, EP, EN, QHP, QHN, TMP)
    ts('ka qside')
    k('s_barrier')
    k(f'''
    s_mul_i32 s47, s{S_J}, {8*PART_STRIDE}
    s_add_u32 s47, s47, {PB}
    v_add_u32 v8, s47, v7
    v_and_b32 v9, 15, v1
    v_lshrrev_b32 v10, 1, v9
    v_mul_u32_u24 v10, {PART_STRIDE}, v10
    v_and_b32 v11, 1, v9
    v_lshl_add_u32 v10, v11, 4, v10
    s_lshl_b32 s46, s{S_WAVE}, 5
    s_add_u32 s46, s46, s47
    s_add_u32 s46, s46, 8192
    v_add_u32 v10, s46, v10
    s_mov_b32 s50, 0
    ''')
    again,got = uid('ga'),uid('gg')
    k(f'{again}:')
    for w in range(8):
        k(f's_mov_b32 s51, {w*PART_STRIDE}')
        k(f'buffer_load_dwordx4 v[{164+4*w}:{167+4*w}], v8, {WS}, s51 offen sc1')
    k(f'buffer_load_dwordx4 v[196:199], v10, {WS}, 0 offen sc1')
    k('s_add_u32 s50, s50, 1')
    k(f's_cmp_gt_u32 s50, {SPIN_MAX}')
    k(f's_cbranch_scc1 {got}')
    k('s_waitcnt vmcnt(0)')
    k(f'v_xor_b32 v132, s{S_N0}, v198')
    k(f'v_xor_b32 v133, s{S_N1}, v199')
    for w in range(8):
        k(f'v_xor_b32 v134, s{S_N0}, v{166+4*w}')
        k(f'v_xor_b32 v135, s{S_N1}, v{167+4*w}')
        k(f'v_or3_b32 v{132+(w&1)}, v{132+(w&1)}, v134, v135')
    k('v_or_b32 v132, v132, v133')
    k('v_cmp_ne_u32 vcc, 0, v132')
    k(f's_cbranch_vccnz {again}')
    k(f'{got}:')
    k('s_waitcnt vmcnt(0)')
    ts('ka kv waited')
    kb_dma(k,2); kb_dma(k,3)
    M=f's{S_MASK}'
    for w in range(8):
        for h in range(2):
            k(f'v_lshlrev_b32 v{132+4*w+2*h}, 16, v{164+4*w+h}')
            k(f'v_and_b32 v{133+4*w+2*h}, {M}, v{164+4*w+h}')
    k(f'v_lshlrev_b32 v200, 16, v196')
    k(f'v_and_b32 v201, {M}, v196')
    k(f'v_lshlrev_b32 v202, 16, v197')
    k(f'v_and_b32 v203, {M}, v197')
    sum8(132)
    lane_sum(200)
    k(f'''
    v_cvt_pk_bf16_f32 v164, v132, v133
    v_cvt_pk_bf16_f32 v165, v134, v135
    v_cvt_pk_bf16_f32 v166, v200, v201
    v_cvt_pk_bf16_f32 v167, v202, v203
    s_lshr_b32 s46, s{S_WAVE}, 1
    s_lshl_b32 s47, s46, 10
    s_and_b32 s48, s{S_WAVE}, 1
    s_lshl_b32 s48, s48, 3
    s_add_u32 s47, s47, s48
    s_add_u32 s47, s47, {KVA}
    v_add_u32 v9, s47, v3
    ds_write_b64 v9, v[164:165]
    s_lshl_b32 s46, s46, 5
    s_add_u32 s46, s46, s48
    s_add_u32 s46, s46, {ZA}
    v_lshl_add_u32 v9, v11, 4, s46
    s_mov_b64 exec, 3
    ds_write_b64 v9, v[166:167]
    s_mov_b64 exec, -1
    s_waitcnt lgkmcnt(0)
    s_barrier
    v_lshlrev_b32 v10, 4, v6
    v_add_u32 v10, {ZA}, v10
    v_add_u32 v11, {KVA}, v3
    ''')
    ts('ka reduced')
    KA_, ZA_, NUM, DEN = 132, 148, 164, 180
    for i in range(4):
        k(f'ds_read_b128 v[{KA_+4*i}:{KA_+4*i+3}], v11 offset:{i*1024}')
        k(f'ds_read_b128 v[{ZA_+4*i}:{ZA_+4*i+3}], v10 offset:{i*32}')
    k('s_waitcnt lgkmcnt(0)')
    PHQ = [QHP, QHP+4, QHN, QHN+4]
    for i in range(4):
        mfma(k, NUM, KA_+4*i, PHQ[i], 0 if i==0 else None)
        mfma(k, DEN, ZA_+4*i, PHQ[i], 0 if i==0 else None)
    k(f'v_add_f32 v9, 0x358637bd, v{DEN}')
    k('v_rcp_f32 v9, v9')
    for i in range(16): k(f'v_mul_f32 v{NUM+i}, v{NUM+i}, v9')
    OP = 56
    for p in range(8): k(f'v_cvt_pk_bf16_f32 v{OP+p}, v{NUM+2*p}, v{NUM+2*p+1}')
    for g in (0,2):
        k(f'v_permlane32_swap_b32 v{OP+2*g}, v{OP+2*g+2}')
        k(f'v_permlane32_swap_b32 v{OP+2*g+1}, v{OP+2*g+3}')
    k(f'''
    s_mul_i32 s46, s{S_J}, {4*CS8}
    v_add_u32 v9, s46, v2
    ''')
    lstores(k, [f's_mov_b32 s46, {WS_O[layer]}', f's_mov_b32 s47, {WS_O[layer]+2*CS8}',
                f'buffer_store_dwordx4 v[{OP}:{OP+3}], v9, {WS}, s46 offen', f'buffer_store_dwordx4 v[{OP+4}:{OP+7}], v9, {WS}, s47 offen'])
    publish(k, F_KA0+layer, True)
    ts('ka published')

def phase_kb(k, ts, layer):
    M=f's{S_MASK}'
    vm = Q(k,'vmcnt',63); lg = Q(k,'lgkmcnt',15)
    last = layer==1
    xin = WS_X1 if layer==0 else WS_X3
    k(f'''
    v_and_b32 v1, 63, v0
    v_and_b32 v5, 31, v1
    v_lshrrev_b32 v6, 5, v1
    s_and_b32 s42, s{S_J}, 1
    s_lshl_b32 s43, s{S_G}, 1
    s_add_u32 s42, s42, s43
    s_lshl_b32 s42, s42, 7
    s_lshl_b32 s43, s59, 5
    s_add_u32 s42, s42, s43
    v_add_u32 v7, s42, v5
    v_mul_u32_u24 v8, {CS8}, v6
    v_and_b32 v12, 255, v7
    v_lshl_add_u32 v8, v12, 4, v8
    s_mul_i32 s44, s{S_G}, {GS}
    v_add_u32 v8, s44, v8
    s_mul_i32 s42, s60, {64*CS8}
    v_add_u32 v2, s42, v8
    v_lshlrev_b32 v3, 4, v1
    s_lshl_b32 s43, s60, 14
    s_lshl_b32 s44, s60, 10
    s_add_u32 s45, s43, s44
    v_add_u32 v9, s45, v3
    s_sub_u32 s45, s43, s44
    s_add_u32 s45, s45, 1024
    v_add_u32 v10, s45, v3
    v_add_u32 v13, {KB_BASE[0]}, v9
    v_add_u32 v14, {KB_BASE[0]}, v10
    s_lshl_b32 s50, s58, 3
    s_lshl_b32 s51, s60, 2
    s_add_u32 s50, s50, s51
    s_mul_i32 s50, s50, {CS8}
    v_add_u32 v11, s50, v8
    s_mov_b32 s42, {xin}
    s_mov_b32 s43, {xin+2*CS8}
    buffer_load_dwordx4 v[112:115], v11, {WS}, s42 offen sc1
    buffer_load_dwordx4 v[116:119], v11, {WS}, s43 offen sc1
    ''')
    ACA, ACB = 16, 32
    for i in range(32): k(f'v_mov_b32 v{16+i}, 0')
    wait_flags(k, F_KA0+layer, 'group')
    ts('kb waited')
    XB = lambda s: 48+4*(s%16)
    def xload(step):
        k(f's_mov_b32 s49, {(WS_O[1-layer] if "xclean" in EXP else WS_O[layer])+step*2*CS8}')
        k(f'buffer_load_dwordx4 v[{XB(step)}:{XB(step)+3}], v2, {WS}, s49 offen sc1')
        vm.issue(('x',step))
    and_base = lambda step: (13,14,(step//8)*32768+(step%8)*2048) if step<16 else (9,10,(step//8-2)*32768+(step%8)*2048)
    WB = lambda st,t: 120+8*st+4*t
    def wread(step):
        st = step&1; a,b,off = and_base(step)
        k(f'ds_read_b128 v[{WB(st,0)}:{WB(st,0)+3}], v{a} offset:{off}'); lg.issue(('w',step))
        k(f'ds_read_b128 v[{WB(st,1)}:{WB(st,1)+3}], v{b} offset:{off}'); lg.issue(('w',step))
    for s in range(16): xload(s)
    if 'kbfirst' in EXP:
        vm.wait(('x',0)); ts('kb first')
    wread(0)
    for step in range(32):
        if step+1 < 32: wread(step+1)
        lg.wait(('w',step))
        vm.wait(('x',step))
        st = step&1; X = XB(step)
        mfma(k, ACA, WB(st,0), X)
        mfma(k, ACB, WB(st,1), X)
        if step+16 < 32: xload(step+16)
        if step==16 and not last and 'kbwtouch' in EXP:
            touch_w(k, 0)
    ts('kb main')
    k('s_barrier')
    k(f's_lshl_b32 s53, s{S_WAVE}, 12')
    k('v_add_u32 v12, s53, v3')
    for g in range(4): k(f'ds_write_b128 v12, v[{ACB+4*g}:{ACB+4*g+3}] offset:{g*1024}')
    k(f'''
    s_xor_b32 s53, s{S_WAVE}, 4
    s_lshl_b32 s53, s53, 12
    v_add_u32 v12, s53, v3
    s_waitcnt lgkmcnt(0)
    s_barrier
    ''')
    for g in range(4): k(f'ds_read_b128 v[{ACB+4*g}:{ACB+4*g+3}], v12 offset:{g*1024}')
    k('s_waitcnt lgkmcnt(0)')
    for i in range(16): k(f'v_add_f32 v{ACA+i}, v{ACA+i}, v{ACB+i}')
    OP = 48
    for p in range(8): k(f'v_cvt_pk_bf16_f32 v{OP+p}, v{ACA+2*p}, v{ACA+2*p+1}')
    for g in (0,2):
        k(f'v_permlane32_swap_b32 v{OP+2*g}, v{OP+2*g+2}')
        k(f'v_permlane32_swap_b32 v{OP+2*g+1}, v{OP+2*g+3}')
    for i in range(8):
        k(f'v_lshlrev_b32 v{56+2*i}, 16, v{OP+i}')
        k(f'v_and_b32 v{57+2*i}, {M}, v{OP+i}')
        k(f'v_lshlrev_b32 v{72+2*i}, 16, v{112+i}')
        k(f'v_and_b32 v{73+2*i}, {M}, v{112+i}')
    for i in range(16): k(f'v_add_f32 v{56+i}, v{56+i}, v{72+i}')
    for i in range(8): k(f'v_cvt_pk_bf16_f32 v{OP+i}, v{56+2*i}, v{57+2*i}')
    if not last:
        lstores(k, [f's_mov_b32 s42, {WS_X2}', f's_mov_b32 s43, {WS_X2+2*CS8}',
                    f'buffer_store_dwordx4 v[{OP}:{OP+3}], v11, {WS}, s42 offen', f'buffer_store_dwordx4 v[{OP+4}:{OP+7}], v11, {WS}, s43 offen'])
        publish(k, F_KB0, True)
        ts('kb published')
    else:
        k(f'''
        s_load_dwordx2 s[{S_A}:{S_A+1}], s[0:1], {ARG['out']}
        s_mov_b32 s{S_A+2}, {4*MB}
        s_lshl_b32 s50, s58, 7
        s_lshl_b32 s51, s60, 6
        s_add_u32 s50, s50, s51
        v_lshlrev_b32 v12, 11, v7
        v_lshl_add_u32 v12, v6, 4, v12
        v_add_u32 v12, s50, v12
        s_waitcnt lgkmcnt(0)
        buffer_store_dwordx4 v[{OP}:{OP+3}], v12, s[{S_A}:{S_A+3}], 0 offen
        buffer_store_dwordx4 v[{OP+4}:{OP+7}], v12, s[{S_A}:{S_A+3}], 0 offen offset:32
        ''')

def gen(name, upto=99):
    k = Kern()
    k(f'.globl {name}\n.p2align 8\n.type {name},@function\n{name}:')
    k(f's_cmp_ge_u32 s2, 256\ns_cbranch_scc1 {name}_end')
    ts = Stamper(k)
    phases = [phase_init_p0, phase_conv,
              lambda k,ts: phase_e(k,ts,0), lambda k,ts: phase_ka(k,ts,0), lambda k,ts: phase_kb(k,ts,0),
              lambda k,ts: phase_e(k,ts,1), lambda k,ts: phase_ka(k,ts,1), lambda k,ts: phase_kb(k,ts,1)]
    for i,p in enumerate(phases):
        if i>=upto: break
        p(k,ts)
    k('s_waitcnt vmcnt(0) lgkmcnt(0)')
    ts.flush()
    k(f'{name}_end:\ns_endpgm')
    return k.finish()

def build(path, upto=99):
    name = NAME+'_kernel'
    head = open('cdna_kernels/'+NAME+'.s.ref').read().split('\n')
    lines=[l for l in head if l.startswith('; Kernarg') or l.startswith(';   offset')]
    lines.append(f'; @launch grid=(256,1,1) block=(512,1,1) lds={LDS_TOTAL}')
    lines.append('.amdgcn_target "amdgcn-amd-amdhsa--gfx950"\n.text')
    lines.append(gen(name, upto))
    lines.append(f'''.section .rodata,"a"
.p2align 6
.amdhsa_kernel {name}
  .amdhsa_next_free_vgpr 256
  .amdhsa_next_free_sgpr 102
  .amdhsa_accum_offset 256
  .amdhsa_group_segment_fixed_size 0
  .amdhsa_kernarg_size 104
  .amdhsa_user_sgpr_count 2
  .amdhsa_user_sgpr_kernarg_segment_ptr 1
  .amdhsa_system_sgpr_workgroup_id_x 1
.end_amdhsa_kernel''')
    open(path,'w').write('\n'.join(lines)+'\n')

if __name__=='__main__':
    upto = int(sys.argv[2]) if len(sys.argv)>2 else 99
    if len(sys.argv)>3 and sys.argv[3]=='stamp': mcommon.STAMPS=True
    build(sys.argv[1], upto)
```
